```python
import torch

def _softmax(x, axis=-1):
    return torch.softmax(x, dim=axis)
def _gelu(x):
    return torch.nn.functional.gelu(x, approximate="tanh")
def _silu(x):
    return torch.nn.functional.silu(x)
def _sigmoid(x):
    return torch.sigmoid(x)
def _layernorm(x, axis=-1, eps=1e-5):
    m = x.mean(dim=axis, keepdim=True)
    v = x.var(dim=axis, keepdim=True, unbiased=False)
    return (x - m) / torch.sqrt(v + eps)
def _scatter_add(tgt, idx, src, axis=0):
    return tgt.clone().index_add_(axis, idx, src)
def _segment_sum(src, seg, n):
    out = torch.zeros((n,) + src.shape[1:], dtype=src.dtype)
    return out.index_add_(0, seg, src)
def _pad(x, pw):
    flat = tuple(v for pair in reversed(pw) for v in pair)
    return torch.nn.functional.pad(x, flat)

kernel_name = 'recurrent_scan__linear_attn_block__glu_gated_swiglu__prompt'

def setup_inputs():

    _w = (lambda a: (lambda t: t.to(torch.bfloat16) if t.is_floating_point() else t)(torch.as_tensor(a)))
    def _A_setup():
        B, S, D = 1, 2048, 448
        return {
            "x": _w((lambda *s: torch.randn(*s, dtype=torch.bfloat16) * 0.05)(B, S, D)),
            "wqkv": _w((lambda *s: torch.randn(*s, dtype=torch.bfloat16) * 0.8)(D, 3 * D)),
            "wo": _w((lambda *s: torch.randn(*s, dtype=torch.bfloat16) * 0.8)(D, D)),
        }
    _A_in = _A_setup()

    def _B_setup():
        B, S, D, F = 1, 2048, 448, 1792
        return {
            "x": _w((lambda *s: torch.randn(*s, dtype=torch.bfloat16) * 0.05)(B, S, D)),
            "w1": _w((lambda *s: torch.randn(*s, dtype=torch.bfloat16) * 0.2)(D, F) * (2.0 / D) ** 0.5),
            "w3": _w((lambda *s: torch.randn(*s, dtype=torch.bfloat16) * 0.2)(D, F) * (2.0 / D) ** 0.5),
            "w2": _w((lambda *s: torch.randn(*s, dtype=torch.bfloat16) * 0.2)(F, D) * (2.0 / F) ** 0.5),
        }
    _B_in = _B_setup()

    return {
        "A_x": _A_in["x"],
        "A_wqkv": _A_in["wqkv"],
        "A_wo": _A_in["wo"],
        "B_x": _B_in["x"],
        "B_w1": _B_in["w1"],
        "B_w3": _B_in["w3"],
        "B_w2": _B_in["w2"],
    }

def reference(A_x, A_wqkv, A_wo, B_x, B_w1, B_w3, B_w2):
    def _A_ref(x, wqkv, wo):
        B, S, D = x.shape
        H = 16; Dh = D // H
        qkv = (lambda x, *d: x.permute(*d))((x @ wqkv).reshape(B, S, 3, H, Dh), 2, 0, 3, 1, 4)
        q, k, v = qkv[0], qkv[1], qkv[2]
        phi = lambda t: torch.where(t > 0, t + 1, torch.exp(t)) + 1e-6
        pq, pk = phi(q), phi(k)
        kv = torch.einsum("bhsd,bhse->bhde", pk, v)
        z = torch.einsum("bhsd->bhd", pk)
        num = torch.einsum("bhqd,bhde->bhqe", pq, kv)
        den = torch.einsum("bhqd,bhd->bhq", pq, z)[..., None] + 1e-6
        o = num / den
        return (lambda x, *d: x.permute(*d))(o, 0, 2, 1, 3).reshape(B, S, D) @ wo

    def _B_ref(x, w1, w3, w2):
        gate = torch.einsum("bsd,df->bsf", x, w1)
        up = torch.einsum("bsd,df->bsf", x, w3)
        h = _silu(gate) * up
        out = torch.einsum("bsf,fd->bsd", h, w2)
        return out

    x = A_x
    xn = _layernorm(x, axis=-1)
    s = _A_ref(xn, A_wqkv, A_wo)
    g = _silu(_B_ref(xn, B_w1, B_w3, B_w2))
    return x + s * g
```

```python
import sys
NAME="recurrent_scan__linear_attn_block__glu_gated_swiglu__prompt"
L=[]
def e(s): L.append("    "+s)
def lab(s): L.append(s+":")
WS_H=0; WS_PQ=0x800000; WS_KVP=0xA00000; WS_KW=0xC00000; WS_Z=0xD00000
LOG2E="0x3fb8aa3b"

def srd(d, lo, nbytes, off=0):
    if off:
        e(f"s_add_u32 s{d}, s{lo}, {off}"); e(f"s_addc_u32 s{d+1}, s{lo+1}, 0")
    else:
        e(f"s_mov_b32 s{d}, s{lo}"); e(f"s_mov_b32 s{d+1}, s{lo+1}")
    e(f"s_mov_b32 s{d+2}, {nbytes}"); e(f"s_mov_b32 s{d+3}, 0x00020000")

def kernel_head(name):
    L.append(f".globl {name}"); L.append(".p2align 8"); L.append(f".type {name},@function"); lab(name)

def silu_mul(dst, g, u, t):
    e(f"v_mul_f32 v{t}, 0xbfb8aa3b, v{g}")
    e(f"v_exp_f32 v{t}, v{t}")
    e("s_nop 0")
    e(f"v_add_f32 v{t}, 1.0, v{t}")
    e(f"v_rcp_f32 v{t}, v{t}")
    e("s_nop 0")
    e(f"v_mul_f32 v{t}, v{t}, v{g}")
    e(f"v_mul_f32 v{dst}, v{t}, v{u}")

def phi(x, t):
    e(f"v_mul_f32 v{t}, {LOG2E}, v{x}")
    e(f"v_exp_f32 v{t}, v{t}")
    e(f"v_cmp_lt_f32 vcc, 0, v{x}")
    e(f"v_add_f32 v{x}, 1.0, v{x}")
    e("s_nop 0")
    e(f"v_cndmask_b32 v{x}, v{t}, v{x}, vcc")
    e(f"v_add_f32 v{x}, 0x358637bd, v{x}")

PA=928; PB=672; BBUF=32*PB+128; LDS_B0=128*PA
def k1():
    kernel_head("k1_kernel")
    e("s_cmp_ge_u32 s2, 256"); e("s_cbranch_scc1 k1_done")
    e("s_load_dwordx4 s[4:7], s[0:1], 0")
    e("s_load_dwordx4 s[8:11], s[0:1], 32")
    e("s_load_dwordx2 s[12:13], s[0:1], 72")
    e("s_lshr_b32 s3, s2, 4")
    e("s_and_b32 s2, s2, 15")
    e("v_lshrrev_b32 v1, 6, v0"); e("s_nop 0"); e("v_readfirstlane_b32 s14, v1")
    e("v_and_b32 v1, 63, v0")
    e("s_waitcnt lgkmcnt(0)")
    srd(16,4,1835008); srd(20,6,1204224); srd(24,8,1605632); srd(28,10,1605632)
    srd(32,12,0x10000000)
    e("v_mov_b32 v4, 0"); e("v_mov_b32 v5, 0")
    e("s_mov_b32 s36, 0x2ab")
    e("v_mul_lo_u32 v6, v0, s36"); e("v_lshrrev_b32 v6, 16, v6")
    e("v_mul_u32_u24 v7, 96, v6"); e("v_sub_u32 v7, v0, v7")
    e("s_mov_b32 s36, 0x5556"); e("v_mul_lo_u32 v8, v7, s36"); e("v_lshrrev_b32 v8, 16, v8")
    e("v_mul_u32_u24 v9, 3, v8"); e("v_sub_u32 v9, v7, v9")
    e(f"v_mul_u32_u24 v10, {PB}, v8"); e("v_and_b32 v11, 0, v8"); e("v_lshlrev_b32 v11, 4, v11")
    e("v_add_u32 v10, v10, v11"); e("v_lshlrev_b32 v11, 6, v9"); e("v_add_u32 v10, v10, v11")
    e(f"v_mul_u32_u24 v11, {BBUF}, v6"); e("v_add_u32 v10, v10, v11"); e(f"v_add_u32 v10, {LDS_B0+56}, v10")
    e("v_cmp_gt_u32 vcc, 192, v0"); e("s_and_saveexec_b64 s[38:39], vcc"); e("s_cbranch_execz k1_nz")
    e("ds_write_b64 v10, v[4:5]")
    lab("k1_nz"); e("s_mov_b64 exec, s[38:39]")
    e("s_mov_b32 s36, 4682"); e("v_mul_lo_u32 v6, v0, s36"); e("v_lshrrev_b32 v6, 16, v6")
    e("v_mul_u32_u24 v7, 14, v6"); e("v_sub_u32 v7, v0, v7")
    e("v_mul_u32_u24 v2, 3584, v6"); e("v_lshlrev_b32 v8, 4, v7"); e("v_add_u32 v2, v2, v8")
    e("s_mul_i32 s36, s2, 224"); e("v_add_u32 v2, s36, v2")
    e(f"v_mul_u32_u24 v3, {PB}, v6"); e("v_and_b32 v9, 0, v6"); e("v_lshlrev_b32 v9, 4, v9")
    e("v_add_u32 v3, v3, v9"); e("v_add_u32 v3, v3, v8"); e(f"v_add_u32 v3, {LDS_B0+192}, v3")
    def qkv_off(idx, vg, vl):
        e("s_mov_b32 s36, 3121"); e(f"v_mul_lo_u32 v6, v{idx}, s36"); e("v_lshrrev_b32 v6, 16, v6")
        e("v_mul_u32_u24 v7, 21, v6"); e(f"v_sub_u32 v7, v{idx}, v7")
        e("s_mov_b32 s36, 9363"); e("v_mul_lo_u32 v8, v7, s36"); e("v_lshrrev_b32 v8, 16, v8")
        e("v_mul_u32_u24 v9, 7, v8"); e("v_sub_u32 v9, v7, v9")
        e(f"v_mul_u32_u24 v{vg}, 2688, v6"); e("v_mul_u32_u24 v10, 896, v8"); e(f"v_add_u32 v{vg}, v{vg}, v10")
        e("v_lshlrev_b32 v10, 3, v9"); e(f"v_add_u32 v{vg}, v{vg}, v10")
        e("s_mul_i32 s36, s2, 56"); e(f"v_add_u32 v{vg}, s36, v{vg}")
        e(f"v_mul_u32_u24 v{vl}, {PB}, v6"); e("v_and_b32 v11, 0, v6"); e("v_lshlrev_b32 v11, 4, v11")
        e(f"v_add_u32 v{vl}, v{vl}, v11"); e(f"v_add_u32 v{vl}, v{vl}, v10"); e("v_lshlrev_b32 v11, 6, v8")
        e(f"v_add_u32 v{vl}, v{vl}, v11"); e(f"v_add_u32 v{vl}, {LDS_B0}, v{vl}")
    qkv_off(0, 12, 13)
    e("v_sub_u32 v14, 1023, v0"); qkv_off(14, 14, 15)
    e("v_cmp_gt_u32 vcc, 448, v0"); e("s_mov_b64 s[40:41], vcc")
    e("v_cmp_lt_u32 vcc, 351, v0"); e("s_mov_b64 s[42:43], vcc")
    def bload(ks):
        e(f"s_mov_b32 s44, {ks*32*3584}"); e(f"s_mov_b32 s45, {ks*32*2688}")
        e("s_mov_b64 exec, s[40:41]")
        e("buffer_load_dwordx4 v[16:19], v2, s[24:27], s44 offen")
        e("buffer_load_dwordx4 v[20:23], v2, s[28:31], s44 offen")
        e("s_mov_b64 exec, s[42:43]")
        e("buffer_load_dwordx2 v[26:27], v14, s[20:23], s45 offen")
        e("s_mov_b64 exec, -1")
        e("buffer_load_dwordx2 v[24:25], v12, s[20:23], s45 offen")
    def bwrite(buf):
        o=buf*BBUF
        e("s_mov_b64 exec, s[40:41]")
        e(f"ds_write_b128 v3, v[16:19] offset:{o}")
        e(f"ds_write_b128 v3, v[20:23] offset:{o+224}")
        e("s_mov_b64 exec, s[42:43]")
        e(f"ds_write_b64 v15, v[26:27] offset:{o}")
        e("s_mov_b64 exec, -1")
        e(f"ds_write_b64 v13, v[24:25] offset:{o}")
    bload(0)
    e("s_lshl_b32 s46, s3, 7"); e("s_lshl_b32 s47, s14, 4"); e("s_add_u32 s46, s46, s47")
    e("v_lshrrev_b32 v6, 3, v1"); e("v_add_u32 v7, s46, v6")
    e("v_mul_u32_u24 v7, 896, v7"); e("v_and_b32 v8, 7, v1"); e("v_lshlrev_b32 v8, 4, v8"); e("v_add_u32 v7, v7, v8")
    for p in range(2):
        if p: e("v_add_u32 v7, 7168, v7")
        for i in range(7):
            e(f"buffer_load_dwordx4 v[{32+p*28+i*4}:{35+p*28+i*4}], v7, s[16:19], 0 offen offset:{i*128}")
    e("v_add_u32 v9, s47, v6"); e(f"v_mul_u32_u24 v9, {PA}, v9"); e("v_add_u32 v9, v9, v8")
    e("s_mov_b32 s48, 0x3f803f80")
    for p in range(2):
        b=32+p*28
        e(f"s_waitcnt vmcnt({7*(1-p)})")
        e("v_mov_b32 v10, 0"); e("v_mov_b32 v11, 0")
        for r in range(28):
            e(f"v_dot2_f32_bf16 v10, v{b+r}, s48, v10")
            e(f"v_dot2_f32_bf16 v11, v{b+r}, v{b+r}, v11")
        for x in (1,2,4):
            e(f"ds_swizzle_b32 v88, v10 offset:{(x<<10)|0x1f}")
            e(f"ds_swizzle_b32 v89, v11 offset:{(x<<10)|0x1f}")
            e("s_waitcnt lgkmcnt(0)")
            e("v_add_f32 v10, v10, v88"); e("v_add_f32 v11, v11, v89")
        e("v_mul_f32 v10, 0x3b124925, v10")
        e("v_mul_f32 v11, 0x3b124925, v11")
        e("v_fma_f32 v11, -v10, v10, v11"); e("v_max_f32 v11, 0, v11")
        e("v_add_f32 v11, 0x3727c5ac, v11")
        e("v_rsq_f32 v11, v11"); e("s_nop 0")
        e("v_mul_f32 v10, v10, v11"); e("v_sub_f32 v10, 0, v10")
        for r in range(28):
            e(f"v_lshlrev_b32 v88, 16, v{b+r}"); e(f"v_and_b32 v89, 0xffff0000, v{b+r}")
            e("v_fma_f32 v88, v88, v11, v10"); e("v_fma_f32 v89, v89, v11, v10")
            e(f"v_cvt_pk_bf16_f32 v{b+r}, v88, v89")
        for i in range(7):
            e(f"ds_write_b128 v9, v[{b+4*i}:{b+4*i+3}] offset:{p*8*PA+i*128}")
    e("s_waitcnt vmcnt(0)"); bwrite(0); bload(1)
    e("s_waitcnt lgkmcnt(0)"); e("s_barrier")
    e("s_and_b32 s49, s14, 3")
    e("v_and_b32 v6, 15, v1"); e("v_lshrrev_b32 v7, 4, v1")
    e("s_lshl_b32 s47, s49, 5"); e("v_add_u32 v8, s47, v6"); e(f"v_mul_u32_u24 v8, {PA}, v8")
    e("v_lshlrev_b32 v9, 4, v7"); e("v_add_u32 v4, v8, v9")
    e("v_lshlrev_b32 v8, 3, v7"); e("v_lshrrev_b32 v9, 2, v6"); e("v_add_u32 v8, v8, v9")
    e(f"v_mul_u32_u24 v9, {PB}, v8"); e("v_and_b32 v8, 0, v8"); e("v_lshlrev_b32 v8, 4, v8"); e("v_add_u32 v9, v9, v8")
    e("v_and_b32 v8, 3, v6"); e("v_lshlrev_b32 v8, 3, v8"); e("v_add_u32 v9, v9, v8"); e(f"v_add_u32 v5, {LDS_B0}, v9")
    ACC=100
    for r in range(80): e(f"v_mov_b32 v{ACC+r}, 0")
    e("s_cmp_ge_u32 s14, 4"); e("s_cbranch_scc1 k1_wn1")
    AF=28; BF=36
    def mainloop(cols, notrans):
        for ks in range(14):
            o=(ks&1)*BBUF
            for m in range(2):
                e(f"ds_read_b128 v[{AF+4*m}:{AF+4*m+3}], v4 offset:{m*16*PA+ks*64}")
            for t,c in enumerate(cols):
                e(f"ds_read_b64_tr_b16 v[{BF+4*t}:{BF+4*t+1}], v5 offset:{o+c}")
                e(f"ds_read_b64_tr_b16 v[{BF+4*t+2}:{BF+4*t+3}], v5 offset:{o+c+4*PB}")
            for half in range(2):
                e(f"s_waitcnt lgkmcnt({10 if half==0 else 0})")
                for t in range(5*half,5*half+5):
                    for m in range(2):
                        a=f"v[{AF+4*m}:{AF+4*m+3}]"; b=f"v[{BF+4*t}:{BF+4*t+3}]"; d=ACC+(t*2+m)*4
                        if t in notrans: e(f"v_mfma_f32_16x16x32_bf16 v[{d}:{d+3}], {a}, {b}, v[{d}:{d+3}]")
                        else: e(f"v_mfma_f32_16x16x32_bf16 v[{d}:{d+3}], {b}, {a}, v[{d}:{d+3}]")
                if half==0 and ks<13:
                    e("s_waitcnt vmcnt(0)"); bwrite((ks+1)&1)
                    if ks<12: bload(ks+2)
            e("s_waitcnt lgkmcnt(0)"); e("s_barrier")
        e("s_nop 7"); e("s_nop 1")
    def hstore(gt, ut, fcol):
        for m in range(2):
            g=ACC+(gt*2+m)*4; u=ACC+(ut*2+m)*4
            for r in range(4): silu_mul(g+r,g+r,u+r,88)
            e(f"v_cvt_pk_bf16_f32 v{g}, v{g}, v{g+1}"); e(f"v_cvt_pk_bf16_f32 v{g+1}, v{g+2}, v{g+3}")
            e(f"buffer_store_dwordx2 v[{g}:{g+1}], v90, s[32:35], 0 offen offset:{fcol*2}" if m==0 else
              f"buffer_store_dwordx2 v[{g}:{g+1}], v91, s[32:35], 0 offen offset:{fcol*2}")
    def epi_common():
        e("v_and_b32 v6, 15, v1"); e("v_lshrrev_b32 v7, 4, v1")
        e("s_lshl_b32 s46, s3, 7"); e("s_lshl_b32 s47, s49, 5"); e("s_add_u32 s46, s46, s47")
        e("v_add_u32 v8, s46, v6"); e("v_mul_u32_u24 v90, 3584, v8"); e("v_lshlrev_b32 v9, 3, v7"); e("v_add_u32 v90, v90, v9")
        e("s_mul_i32 s47, s2, 224"); e("v_add_u32 v90, s47, v90"); e(f"v_add_u32 v91, {16*3584}, v90")
    mainloop([0,32,64,96,128,160,192,224,416,448], {2,3,4,5})
    epi_common()
    hstore(6,8,0); hstore(7,9,16)
    e("v_mul_u32_u24 v92, 896, v8"); e("v_add_u32 v92, v92, v9"); e("s_mul_i32 s47, s2, 56"); e("v_add_u32 v92, s47, v92")
    e(f"v_add_u32 v92, {WS_PQ}, v92"); e("v_add_u32 v93, 14336, v92")
    for t in range(2):
        for m in range(2):
            d=ACC+(t*2+m)*4
            for r in range(4): phi(d+r,88)
            e(f"v_cvt_pk_bf16_f32 v{d}, v{d}, v{d+1}"); e(f"v_cvt_pk_bf16_f32 v{d+1}, v{d+2}, v{d+3}")
            if t==1:
                e("v_cmp_gt_u32 vcc, 48, v1"); e("s_and_saveexec_b64 s[38:39], vcc")
            e(f"buffer_store_dwordx2 v[{d}:{d+1}], v{92+m}, s[32:35], 0 offen offset:{t*32}")
            if t==1: e("s_mov_b64 exec, s[38:39]")
    for t in (2,3):
        for m in range(2):
            d=ACC+(t*2+m)*4
            for r in range(4): phi(d+r,88)
    e("v_and_b32 v6, 15, v1"); e("v_cmp_eq_u32 vcc, 12, v6"); e("s_nop 1")
    for m in range(2):
        d=ACC+(5*2+m)*4
        for r in range(4): e(f"v_cndmask_b32 v{d+r}, v{d+r}, 1.0, vcc")
    for t in range(2,6):
        f=AF+(t-2)*4
        for m in range(2):
            d=ACC+(t*2+m)*4
            e(f"v_cvt_pk_bf16_f32 v{f+2*m}, v{d}, v{d+1}"); e(f"v_cvt_pk_bf16_f32 v{f+2*m+1}, v{d+2}, v{d+3}")
    for r in range(16): e(f"v_mov_b32 v{48+r}, 0")
    e("s_nop 1")
    for dt in range(2):
        for et in range(2):
            d=48+(dt*2+et)*4
            e(f"v_mfma_f32_16x16x32_bf16 v[{d}:{d+3}], v[{AF+dt*4}:{AF+dt*4+3}], v[{AF+8+et*4}:{AF+8+et*4+3}], v[{d}:{d+3}]")
    e("s_nop 7"); e("s_nop 1")
    e("v_lshrrev_b32 v7, 4, v1"); e("v_lshlrev_b32 v7, 9, v7"); e("v_lshlrev_b32 v6, 2, v6"); e("v_add_u32 v7, v7, v6")
    e("s_lshl_b32 s47, s49, 12"); e("v_add_u32 v7, s47, v7"); e(f"v_add_u32 v7, {LDS_B0}, v7")
    for dt in range(2):
        for et in range(2):
            d=48+(dt*2+et)*4
            for r in range(4): e(f"ds_write_b32 v7, v{d+r} offset:{dt*2048+r*128+et*64}")
    e("s_branch k1_red")
    lab("k1_wn1")
    mainloop([256,288,320,352,384,480,512,544,576,608], set())
    epi_common()
    for t in range(5): hstore(t,5+t,32+16*t)
    lab("k1_red")
    e("s_waitcnt lgkmcnt(0)"); e("s_barrier")
    e("s_cmp_ge_u32 s14, 4"); e("s_cbranch_scc1 k1_done")
    e(f"v_lshlrev_b32 v7, 4, v0"); e(f"v_add_u32 v8, {LDS_B0}, v7")
    for w in range(4): e(f"ds_read_b128 v[{48+4*w}:{51+4*w}], v8 offset:{w*4096}")
    e("s_waitcnt lgkmcnt(0)")
    for r in range(4):
        e(f"v_add_f32 v{48+r}, v{48+r}, v{52+r}"); e(f"v_add_f32 v{56+r}, v{56+r}, v{60+r}"); e(f"v_add_f32 v{48+r}, v{48+r}, v{56+r}")
    e("s_lshl_b32 s46, s3, 4"); e("s_add_u32 s46, s46, s2"); e("s_lshl_b32 s46, s46, 12"); e(f"s_add_u32 s46, s46, {WS_KVP}")
    e("buffer_store_dwordx4 v[48:51], v7, s[32:35], s46 offen")
    lab("k1_done"); e("s_endpgm")

def kr():
    kernel_head("kr_kernel")
    e("s_cmp_ge_u32 s2, 16"); e("s_cbranch_scc1 kr_done")
    e("s_load_dwordx2 s[4:5], s[0:1], 16"); e("s_load_dwordx2 s[12:13], s[0:1], 72")
    e("s_waitcnt lgkmcnt(0)")
    srd(16,4,401408); srd(32,12,0x10000000)
    e("v_lshlrev_b32 v1, 4, v0")
    e("s_lshl_b32 s3, s2, 12"); e(f"s_add_u32 s3, s3, {WS_KVP}")
    for m in range(16):
        e(f"buffer_load_dwordx4 v[{8+4*m}:{11+4*m}], v1, s[32:35], s3 offen"); e("s_add_u32 s3, s3, 0x10000")
    e("v_lshlrev_b32 v2, 2, v0"); e("s_mul_i32 s3, s2, 25088")
    for k in range(28): e(f"buffer_load_dword v{80+k}, v2, s[16:19], s3 offen offset:{k*896}" if k<4 else
                          f"buffer_load_dword v{80+k}, v{3}, s[16:19], s3 offen offset:{(k%4)*896}")  if (k<4 or True) and (k%4 or k==0 or not e(f"v_add_u32 v3, {(k//4)*4*896}, v2")) else None
    e("s_waitcnt vmcnt(28)")
    for m in range(1,16):
        for r in range(4): e(f"v_add_f32 v{8+r}, v{8+r}, v{8+4*m+r}")
    e("v_cvt_pk_bf16_f32 v12, v8, v9"); e("v_cvt_pk_bf16_f32 v13, v10, v11")
    e("v_lshlrev_b32 v8, 16, v12"); e("v_and_b32 v9, 0xffff0000, v12"); e("v_lshlrev_b32 v10, 16, v13"); e("v_and_b32 v11, 0xffff0000, v13")
    e("ds_write_b128 v1, v[8:11]"); e("s_waitcnt lgkmcnt(0)"); e("s_barrier")
    e("v_lshlrev_b32 v4, 7, v0"); e("ds_read_b32 v5, v4 offset:112")
    e("s_mul_i32 s3, s2, 112"); e(f"s_add_u32 s3, s3, {WS_Z}")
    e("v_cmp_gt_u32 vcc, 28, v0"); e("s_and_saveexec_b64 s[38:39], vcc"); e("s_cbranch_execz kr_nz")
    e("s_waitcnt lgkmcnt(0)"); e("buffer_store_dword v5, v2, s[32:35], s3 offen")
    lab("kr_nz"); e("s_mov_b64 exec, s[38:39]")
    e("s_waitcnt vmcnt(0) lgkmcnt(0)")
    for k in range(28):
        e(f"v_lshlrev_b32 v{112+k}, 16, v{80+k}"); e(f"v_and_b32 v{80+k}, 0xffff0000, v{80+k}")
    e("v_mov_b32 v4, 0")
    e("s_mul_i32 s3, s2, 25088"); e(f"s_add_u32 s3, s3, {WS_KW}")
    e("v_cmp_gt_u32 vcc, 224, v0"); e("s_and_saveexec_b64 s[38:39], vcc")
    for d in range(28):
        for q in range(7): e(f"ds_read_b128 v[{40+4*q}:{43+4*q}], v4 offset:{d*128+q*16}")
        e("s_waitcnt lgkmcnt(0)")
        e(f"v_mul_f32 v6, v40, v112"); e(f"v_mul_f32 v7, v40, v80")
        for k in range(1,28):
            e(f"v_fmac_f32 v6, v{40+k}, v{112+k}"); e(f"v_fmac_f32 v7, v{40+k}, v{80+k}")
        e("v_cvt_pk_bf16_f32 v6, v6, v7")
        e(f"buffer_store_dword v6, v2, s[32:35], s3 offen"); e("s_add_u32 s3, s3, 896"); e("s_nop 1")
    lab("kr_done"); e("s_endpgm")

P2=160
CH=64*P2+64*P2+0
A2P=928; A2OFF=2*(64*P2+64*P2+128)
def k23():
    kernel_head("k23_kernel")
    e("s_cmp_ge_u32 s2, 224"); e("s_cbranch_scc1 k23_done")
    e("s_load_dwordx2 s[4:5], s[0:1], 0"); e("s_load_dwordx2 s[6:7], s[0:1], 48")
    e("s_load_dwordx2 s[8:9], s[0:1], 56"); e("s_load_dwordx2 s[12:13], s[0:1], 72")
    e("s_and_b32 s3, s2, 7"); e("s_lshr_b32 s2, s2, 3")
    e("s_mul_i32 s14, s2, 9363"); e("s_lshr_b32 s14, s14, 16")
    e("s_mul_i32 s15, s14, 7"); e("s_sub_u32 s2, s2, s15")
    e("s_lshl_b32 s14, s14, 3"); e("s_add_u32 s3, s3, s14")
    e("v_lshrrev_b32 v1, 6, v0"); e("s_nop 0"); e("v_readfirstlane_b32 s14, v1"); e("v_and_b32 v1, 63, v0")
    e("s_waitcnt lgkmcnt(0)")
    srd(16,4,1835008); srd(20,6,1605632); srd(24,8,1835008); srd(32,12,0x10000000)
    srd(28,12,401408,WS_KW)
    BOFF=64*P2; BUF=64*P2+64*P2+128
    e("v_lshrrev_b32 v6, 3, v0"); e("v_and_b32 v7, 7, v0"); e("v_lshlrev_b32 v7, 4, v7")
    e("s_lshl_b32 s46, s3, 6"); e("v_add_u32 v8, s46, v6"); e("v_mul_u32_u24 v2, 3584, v8"); e("v_add_u32 v2, v2, v7")
    e("v_mul_u32_u24 v3, 896, v6"); e("v_add_u32 v3, v3, v7"); e("s_lshl_b32 s47, s2, 7"); e("v_add_u32 v3, s47, v3")
    e(f"v_mul_u32_u24 v4, {P2}, v6"); e("v_add_u32 v4, v4, v7")
    e("v_and_b32 v8, 0, v6"); e("v_lshlrev_b32 v8, 4, v8"); e("v_add_u32 v5, v4, v8"); e(f"v_add_u32 v5, {BOFF}, v5")
    e("s_and_b32 s49, s14, 3"); e("s_lshr_b32 s50, s14, 2")
    e("v_and_b32 v6, 15, v1"); e("v_lshrrev_b32 v7, 4, v1")
    e("s_lshl_b32 s47, s49, 4"); e("v_add_u32 v8, s47, v6"); e(f"v_mul_u32_u24 v9, {P2}, v8"); e("v_lshlrev_b32 v10, 4, v7"); e("v_add_u32 v10, v9, v10")
    e(f"v_mul_u32_u24 v9, {A2P}, v8"); e("v_lshlrev_b32 v12, 4, v7"); e("v_add_u32 v12, v9, v12"); e(f"v_add_u32 v12, {A2OFF}, v12")
    e("v_lshlrev_b32 v8, 3, v7"); e("v_lshrrev_b32 v9, 2, v6"); e("v_add_u32 v8, v8, v9")
    e(f"v_mul_u32_u24 v9, {P2}, v8"); e("v_and_b32 v8, 0, v8"); e("v_lshlrev_b32 v8, 4, v8"); e("v_add_u32 v9, v9, v8")
    e("v_and_b32 v8, 3, v6"); e("v_lshlrev_b32 v8, 3, v8"); e("v_add_u32 v9, v9, v8"); e("s_lshl_b32 s47, s50, 6"); e("v_add_u32 v9, s47, v9"); e(f"v_add_u32 v11, {BOFF}, v9")
    NC=28+7
    ST=16
    def gload(c):
        s=ST+(c%3)*8
        if c<28:
            e(f"s_mov_b32 s44, {c*128}"); e(f"s_mov_b32 s45, {c*64*896}")
            e(f"buffer_load_dwordx4 v[{s}:{s+3}], v2, s[32:35], s44 offen")
            e(f"buffer_load_dwordx4 v[{s+4}:{s+7}], v3, s[20:23], s45 offen")
        else:
            e(f"s_mov_b32 s45, {(c-28)*64*896}")
            e(f"buffer_load_dwordx4 v[{s+4}:{s+7}], v3, s[28:31], s45 offen")
    def gwrite(c):
        s=ST+(c%3)*8; o=(c&1)*BUF
        if c<28: e(f"ds_write_b128 v4, v[{s}:{s+3}] offset:{o}")
        e(f"ds_write_b128 v5, v[{s+4}:{s+7}] offset:{o}")
    def nld(c): return 0 if c>=NC else (2 if c<28 else 1)
    gload(0); gload(1);
    e("v_and_b32 v13, 15, v0"); e("v_mul_u32_u24 v14, 56, v13")
    e("v_lshrrev_b32 v15, 4, v0")
    e("v_lshlrev_b32 v46, 1, v14")
    for q in range(7): e(f"buffer_load_dwordx4 v[{48+4*q}:{51+4*q}], v46, s[32:35], 0 offen offset:{q*16}" .replace("s[32:35], 0","s[32:35], s51"))if q or not e(f"s_mov_b32 s51, {WS_Z}") else None
    for i in range(2):
        e(f"v_add_u32 v47, {32*i}, v15"); e("v_add_u32 v40, s46, v47"); e("v_mul_u32_u24 v40, 896, v40"); e("v_add_u32 v40, v40, v14")
        e(f"s_mov_b32 s51, {WS_PQ}")
        for q in range(7): e(f"buffer_load_dwordx2 v[{76+14*i+2*q}:{77+14*i+2*q}], v40, s[32:35], s51 offen offset:{q*8}")
    for i in range(2):
        e(f"s_waitcnt vmcnt({14-7*i-7})")
        b=76+14*i
        e("v_mov_b32 v41, 0x358637bd")
        for k in range(14):
            e(f"v_lshlrev_b32 v{120+2*k}, 16, v{b+k}"); e(f"v_and_b32 v{121+2*k}, 0xffff0000, v{b+k}")
            e(f"v_fmac_f32 v41, v{120+2*k}, v{48+2*k}"); e(f"v_fmac_f32 v41, v{121+2*k}, v{49+2*k}")
        e("v_rcp_f32 v41, v41"); e("s_nop 0")
        for k in range(14):
            e(f"v_mul_f32 v{120+2*k}, v{120+2*k}, v41"); e(f"v_mul_f32 v{121+2*k}, v{121+2*k}, v41")
            e(f"v_cvt_pk_bf16_f32 v{b+k}, v{120+2*k}, v{121+2*k}")
        e(f"v_add_u32 v47, {32*i}, v15"); e(f"v_mul_u32_u24 v40, {A2P}, v47"); e("v_add_u32 v40, v40, v14")
        for q in range(7): e(f"ds_write_b64 v40, v[{b+2*q}:{b+2*q+1}] offset:{A2OFF+q*8}")
    for r in range(16): e(f"v_mov_b32 v{100+r}, 0")
    e("s_waitcnt vmcnt(2)"); gwrite(0); gload(2)
    e("s_waitcnt lgkmcnt(0)"); e("s_barrier")
    for c in range(NC):
        o=(c&1)*BUF; acc=100 if c<28 else 108
        for ks in range(2):
            if c<28: e(f"ds_read_b128 v[{40+4*ks}:{43+4*ks}], v10 offset:{o+ks*64}")
            else: e(f"ds_read_b128 v[{40+4*ks}:{43+4*ks}], v12 offset:{(c-28)*128+ks*64}")
            for t in range(2):
                b=48+ks*8+t*4
                e(f"ds_read_b64_tr_b16 v[{b}:{b+1}], v11 offset:{o+ks*32*P2+t*32}")
                e(f"ds_read_b64_tr_b16 v[{b+2}:{b+3}], v11 offset:{o+ks*32*P2+t*32+4*P2}")
        for ks in range(2):
            e(f"s_waitcnt lgkmcnt({5*(1-ks)})")
            for t in range(2):
                b=48+ks*8+t*4
                e(f"v_mfma_f32_16x16x32_bf16 v[{acc+4*t}:{acc+4*t+3}], v[{b}:{b+3}], v[{40+4*ks}:{43+4*ks}], v[{acc+4*t}:{acc+4*t+3}]")
        if c+1<NC:
            e(f"s_waitcnt vmcnt({nld(c+2)})"); gwrite(c+1)
            if c+3<NC: gload(c+3)
        e("s_waitcnt lgkmcnt(0)"); e("s_barrier")
    e("v_and_b32 v6, 15, v1"); e("v_lshrrev_b32 v7, 4, v1")
    e("s_lshl_b32 s47, s49, 4"); e("s_add_u32 s47, s47, s46"); e("v_add_u32 v8, s47, v6"); e("v_mul_u32_u24 v8, 896, v8")
    e("v_lshlrev_b32 v9, 3, v7"); e("v_add_u32 v8, v8, v9"); e("s_lshl_b32 s47, s2, 7"); e("s_lshl_b32 s48, s50, 6"); e("s_add_u32 s47, s47, s48"); e("v_add_u32 v8, s47, v8")
    for t in range(2): e(f"buffer_load_dwordx2 v[{20+2*t}:{21+2*t}], v8, s[16:19], 0 offen offset:{t*32}")
    e("v_mov_b32 v30, 1.0")
    for r in range(8): silu_mul(100+r,100+r,30,31)
    e("s_waitcnt vmcnt(0)")
    for t in range(2):
        e(f"v_lshlrev_b32 v24, 16, v{20+2*t}"); e(f"v_and_b32 v25, 0xffff0000, v{20+2*t}")
        e(f"v_lshlrev_b32 v26, 16, v{21+2*t}"); e(f"v_and_b32 v27, 0xffff0000, v{21+2*t}")
        for r in range(4): e(f"v_fmac_f32 v{24+r}, v{100+4*t+r}, v{108+4*t+r}")
        e("v_cvt_pk_bf16_f32 v24, v24, v25"); e("v_cvt_pk_bf16_f32 v25, v26, v27")
        e(f"buffer_store_dwordx2 v[24:25], v8, s[24:27], 0 offen offset:{t*32}"); e("s_nop 1")
    lab("k23_done"); e("s_endpgm")

hdr=open(f"cdna_kernels/{NAME}.s.ref").read().split("; @launch")[0]
k1(); kr(); k23()
LDS1=LDS_B0+2*BBUF; LDS23=A2OFF+64*A2P
out=hdr+f"; @launch kernel=k1_kernel grid=(256,1,1) block=(512,1,1) lds={LDS1}\n"
out+="; @launch kernel=kr_kernel grid=(16,1,1) block=(256,1,1) lds=4096\n"
out+=f"; @launch kernel=k23_kernel grid=(224,1,1) block=(512,1,1) lds={LDS23}\n"
out+='.amdgcn_target "amdgcn-amd-amdhsa--gfx950"\n.text\n'+"\n".join(L)+"\n"
out+='.section .rodata,"a"\n'
for k,v in (("k1_kernel",184),("kr_kernel",144),("k23_kernel",152)):
    out+=f""".p2align 6
.amdhsa_kernel {k}
  .amdhsa_next_free_vgpr {v}
  .amdhsa_next_free_sgpr 102
  .amdhsa_accum_offset {v}
  .amdhsa_group_segment_fixed_size 0
  .amdhsa_kernarg_size 80
  .amdhsa_user_sgpr_count 2
  .amdhsa_user_sgpr_kernarg_segment_ptr 1
  .amdhsa_system_sgpr_workgroup_id_x 1
.end_amdhsa_kernel
"""
open(f"cdna_kernels/{NAME}.s","w").write(out)
print(LDS1,LDS23,len(out))
for d,m,n in ((14,4682,512),(21,3121,1024),(7,9363,64),(96,683,512),(3,0x5556,96)):
    assert all((t*m)>>16==t//d for t in range(n)),d
```

```python
import sys
NAME="recurrent_scan__linear_attn_block__glu_gated_swiglu__prompt"
L=[]
import os
X=os.environ.get("X","")
def e(s):
    if "m" in X and s.startswith("v_mfma"): return
    if "r" in X and s.startswith("ds_read_b64_tr"): return
    if "w" in X and s.startswith("ds_write"): return
    if "g" in X and s.startswith("buffer_load"): return
    if "b" in X and s.startswith("s_barrier"): return
    if "s" in X and s.startswith("buffer_store"): return
    if "t" in X and (s.startswith("v_exp") or s.startswith("v_rcp")): return
    L.append("    "+s)
def lab(s): L.append(s+":")
WS_H=0; WS_PQ=0x800000; WS_KVP=0xA00000; WS_KW=0xC00000; WS_Z=0xD00000
LOG2E="0x3fb8aa3b"

def srd(d, lo, nbytes, off=0):
    if off:
        e(f"s_add_u32 s{d}, s{lo}, {off}"); e(f"s_addc_u32 s{d+1}, s{lo+1}, 0")
    else:
        e(f"s_mov_b32 s{d}, s{lo}"); e(f"s_mov_b32 s{d+1}, s{lo+1}")
    e(f"s_mov_b32 s{d+2}, {nbytes}"); e(f"s_mov_b32 s{d+3}, 0x00020000")

NST=[0]
def stamp():
    if "T" not in X: return
    i=NST[0]; NST[0]+=1
    e(f"s_memtime s[{70+2*i}:{71+2*i}]"); e("s_waitcnt lgkmcnt(0)")
def stamp_out(n):
    if "T" not in X: return
    e("s_load_dwordx2 s[64:65], s[0:1], 64"); e("s_waitcnt lgkmcnt(0)")
    e("s_mov_b32 s66, 256"); e("s_mov_b32 s67, 0x00020000")
    e("v_mov_b32 v1, 0")
    e("s_cmp_lg_u32 s53, 0"); e("s_cbranch_scc1 stamp_skip%d"%n)
    for i in range(NST[0]):
        e(f"s_sub_u32 s68, s{70+2*i}, s70"); e("v_mov_b32 v2, s68"); e(f"buffer_store_dword v2, v1, s[64:67], 0 offen offset:{4*i}")
    lab("stamp_skip%d"%n); NST[0]=0
def kernel_head(name):
    L.append(f".globl {name}"); L.append(".p2align 8"); L.append(f".type {name},@function"); lab(name)

def silu_mul(dst, g, u, t):
    e(f"v_mul_f32 v{t}, 0xbfb8aa3b, v{g}")
    e(f"v_exp_f32 v{t}, v{t}")
    e("s_nop 0")
    e(f"v_add_f32 v{t}, 1.0, v{t}")
    e(f"v_rcp_f32 v{t}, v{t}")
    e("s_nop 0")
    e(f"v_mul_f32 v{t}, v{t}, v{g}")
    e(f"v_mul_f32 v{dst}, v{t}, v{u}")

def phi(x, t):
    e(f"v_mul_f32 v{t}, {LOG2E}, v{x}")
    e(f"v_exp_f32 v{t}, v{t}")
    e(f"v_cmp_lt_f32 vcc, 0, v{x}")
    e(f"v_add_f32 v{x}, 1.0, v{x}")
    e("s_nop 0")
    e(f"v_cndmask_b32 v{x}, v{t}, v{x}, vcc")
    e(f"v_add_f32 v{x}, 0x358637bd, v{x}")

PA=928; PB=704; BBUF=32*PB; LDS_B0=128*PA
def k1():
    kernel_head("k1_kernel")
    e("s_cmp_ge_u32 s2, 256"); e("s_cbranch_scc1 k1_done"); stamp()
    e("v_lshrrev_b32 v1, 6, v0"); e("s_nop 0"); e("v_readfirstlane_b32 s53, v1"); e("s_nop 3"); e("s_add_u32 s53, s53, s2")
    e("s_load_dwordx4 s[4:7], s[0:1], 0")
    e("s_load_dwordx4 s[8:11], s[0:1], 32")
    e("s_load_dwordx2 s[12:13], s[0:1], 72")
    e("s_lshr_b32 s3, s2, 4")
    e("s_and_b32 s2, s2, 15")
    e("v_lshrrev_b32 v1, 6, v0"); e("s_nop 0"); e("v_readfirstlane_b32 s14, v1")
    e("v_and_b32 v1, 63, v0")
    e("s_waitcnt lgkmcnt(0)")
    srd(16,4,1835008); srd(20,6,1204224); srd(24,8,1605632); srd(28,10,1605632)
    srd(32,12,0x10000000)
    e("v_mov_b32 v4, 0"); e("v_mov_b32 v5, 0")
    e("s_mov_b32 s36, 0x2ab")
    e("v_mul_lo_u32 v6, v0, s36"); e("v_lshrrev_b32 v6, 16, v6")
    e("v_mul_u32_u24 v7, 96, v6"); e("v_sub_u32 v7, v0, v7")
    e("s_mov_b32 s36, 0x5556"); e("v_mul_lo_u32 v8, v7, s36"); e("v_lshrrev_b32 v8, 16, v8")
    e("v_mul_u32_u24 v9, 3, v8"); e("v_sub_u32 v9, v7, v9")
    e(f"v_mul_u32_u24 v10, {PB}, v8"); e("v_and_b32 v11, 8, v8"); e("v_lshlrev_b32 v11, 2, v11")
    e("v_add_u32 v10, v10, v11"); e("v_lshlrev_b32 v11, 6, v9"); e("v_add_u32 v10, v10, v11")
    e(f"v_mul_u32_u24 v11, {BBUF}, v6"); e("v_add_u32 v10, v10, v11"); e(f"v_add_u32 v10, {LDS_B0+56}, v10")
    e("v_cmp_gt_u32 vcc, 192, v0"); e("s_and_saveexec_b64 s[38:39], vcc"); e("s_cbranch_execz k1_nz")
    e("ds_write_b64 v10, v[4:5]")
    lab("k1_nz"); e("s_mov_b64 exec, s[38:39]")
    e("s_mov_b32 s36, 4682"); e("v_mul_lo_u32 v6, v0, s36"); e("v_lshrrev_b32 v6, 16, v6")
    e("v_mul_u32_u24 v7, 14, v6"); e("v_sub_u32 v7, v0, v7")
    e("v_mul_u32_u24 v2, 3584, v6"); e("v_lshlrev_b32 v8, 4, v7"); e("v_add_u32 v2, v2, v8")
    e("s_mul_i32 s36, s2, 224"); e("v_add_u32 v2, s36, v2")
    e(f"v_mul_u32_u24 v3, {PB}, v6"); e("v_and_b32 v9, 8, v6"); e("v_lshlrev_b32 v9, 2, v9")
    e("v_add_u32 v3, v3, v9"); e("v_add_u32 v3, v3, v8"); e(f"v_add_u32 v3, {LDS_B0+192}, v3")
    def qkv_off(idx, vg, vl):
        e("s_mov_b32 s36, 3121"); e(f"v_mul_lo_u32 v6, v{idx}, s36"); e("v_lshrrev_b32 v6, 16, v6")
        e("v_mul_u32_u24 v7, 21, v6"); e(f"v_sub_u32 v7, v{idx}, v7")
        e("s_mov_b32 s36, 9363"); e("v_mul_lo_u32 v8, v7, s36"); e("v_lshrrev_b32 v8, 16, v8")
        e("v_mul_u32_u24 v9, 7, v8"); e("v_sub_u32 v9, v7, v9")
        e(f"v_mul_u32_u24 v{vg}, 2688, v6"); e("v_mul_u32_u24 v10, 896, v8"); e(f"v_add_u32 v{vg}, v{vg}, v10")
        e("v_lshlrev_b32 v10, 3, v9"); e(f"v_add_u32 v{vg}, v{vg}, v10")
        e("s_mul_i32 s36, s2, 56"); e(f"v_add_u32 v{vg}, s36, v{vg}")
        e(f"v_mul_u32_u24 v{vl}, {PB}, v6"); e("v_and_b32 v11, 8, v6"); e("v_lshlrev_b32 v11, 2, v11")
        e(f"v_add_u32 v{vl}, v{vl}, v11"); e(f"v_add_u32 v{vl}, v{vl}, v10"); e("v_lshlrev_b32 v11, 6, v8")
        e(f"v_add_u32 v{vl}, v{vl}, v11"); e(f"v_add_u32 v{vl}, {LDS_B0}, v{vl}")
    qkv_off(0, 12, 13)
    e("v_sub_u32 v14, 1023, v0"); qkv_off(14, 14, 15)
    e("v_cmp_gt_u32 vcc, 448, v0"); e("s_mov_b64 s[40:41], vcc")
    e("v_cmp_lt_u32 vcc, 351, v0"); e("s_mov_b64 s[42:43], vcc")
    def bload(ks):
        q=16 if ks%2==0 else 180
        if ks==0: e("s_mov_b32 s44, 0"); e("s_mov_b32 s45, 0")
        else: e(f"s_add_u32 s44, s44, {32*3584}"); e(f"s_add_u32 s45, s45, {32*2688}")
        e("s_mov_b64 exec, s[40:41]")
        e(f"buffer_load_dwordx4 v[{q}:{q+3}], v2, s[24:27], s44 offen")
        e(f"buffer_load_dwordx4 v[{q+4}:{q+7}], v2, s[28:31], s44 offen")
        e("s_mov_b64 exec, s[42:43]")
        e(f"buffer_load_dwordx2 v[{q+10}:{q+11}], v14, s[20:23], s45 offen")
        e("s_mov_b64 exec, -1")
        e(f"buffer_load_dwordx2 v[{q+8}:{q+9}], v12, s[20:23], s45 offen")
    def bwrite(buf):
        o=buf*BBUF; q=16 if buf==0 else 180
        e("s_mov_b64 exec, s[40:41]")
        e(f"ds_write_b128 v3, v[{q}:{q+3}] offset:{o}")
        e(f"ds_write_b128 v3, v[{q+4}:{q+7}] offset:{o+224}")
        e("s_mov_b64 exec, s[42:43]")
        e(f"ds_write_b64 v15, v[{q+10}:{q+11}] offset:{o}")
        e("s_mov_b64 exec, -1")
        e(f"ds_write_b64 v13, v[{q+8}:{q+9}] offset:{o}")
    bload(0); bload(1)
    e("s_lshl_b32 s46, s3, 7"); e("s_lshl_b32 s47, s14, 4"); e("s_add_u32 s46, s46, s47")
    e("v_lshrrev_b32 v6, 3, v1"); e("v_add_u32 v7, s46, v6")
    e("v_mul_u32_u24 v7, 896, v7"); e("v_and_b32 v8, 7, v1"); e("v_lshlrev_b32 v8, 4, v8"); e("v_add_u32 v7, v7, v8")
    for p in range(2):
        if p: e("v_add_u32 v7, 7168, v7")
        for i in range(7):
            e(f"buffer_load_dwordx4 v[{32+p*28+i*4}:{35+p*28+i*4}], v7, s[16:19], 0 offen offset:{i*128}")
    e("v_add_u32 v9, s47, v6"); e(f"v_mul_u32_u24 v9, {PA}, v9"); e("v_add_u32 v9, v9, v8")
    e("s_mov_b32 s48, 0x3f803f80")
    for p in range(2):
        b=32+p*28
        e(f"s_waitcnt vmcnt({7*(1-p)})")
        if p==0: stamp()
        e("v_mov_b32 v10, 0"); e("v_mov_b32 v11, 0")
        for r in range(28):
            e(f"v_dot2_f32_bf16 v10, v{b+r}, s48, v10")
            e(f"v_dot2_f32_bf16 v11, v{b+r}, v{b+r}, v11")
        for x in (1,2,4):
            e(f"ds_swizzle_b32 v88, v10 offset:{(x<<10)|0x1f}")
            e(f"ds_swizzle_b32 v89, v11 offset:{(x<<10)|0x1f}")
            e("s_waitcnt lgkmcnt(0)")
            e("v_add_f32 v10, v10, v88"); e("v_add_f32 v11, v11, v89")
        e("v_mul_f32 v10, 0x3b124925, v10")
        e("v_mul_f32 v11, 0x3b124925, v11")
        e("v_fma_f32 v11, -v10, v10, v11"); e("v_max_f32 v11, 0, v11")
        e("v_add_f32 v11, 0x3727c5ac, v11")
        e("v_rsq_f32 v11, v11"); e("s_nop 0")
        e("v_mul_f32 v10, v10, v11"); e("v_sub_f32 v10, 0, v10")
        for r in range(28):
            e(f"v_lshlrev_b32 v88, 16, v{b+r}"); e(f"v_and_b32 v89, 0xffff0000, v{b+r}")
            e("v_fma_f32 v88, v88, v11, v10"); e("v_fma_f32 v89, v89, v11, v10")
            e(f"v_cvt_pk_bf16_f32 v{b+r}, v88, v89")
        for i in range(7):
            e(f"ds_write_b128 v9, v[{b+4*i}:{b+4*i+3}] offset:{p*8*PA+i*128}")
    e("s_waitcnt vmcnt(4)"); bwrite(0); bload(2); e("s_waitcnt vmcnt(4)"); bwrite(1); bload(3)
    e("s_waitcnt lgkmcnt(0)"); e("s_barrier")
    e("s_and_b32 s49, s14, 3")
    e("v_and_b32 v6, 15, v1"); e("v_lshrrev_b32 v7, 4, v1")
    e("s_lshl_b32 s47, s49, 5"); e("v_add_u32 v8, s47, v6"); e(f"v_mul_u32_u24 v8, {PA}, v8")
    e("v_lshlrev_b32 v9, 4, v7"); e("v_add_u32 v4, v8, v9")
    e("v_lshlrev_b32 v8, 3, v7"); e("v_lshrrev_b32 v9, 2, v6"); e("v_add_u32 v8, v8, v9")
    e(f"v_mul_u32_u24 v9, {PB}, v8"); e("v_and_b32 v8, 8, v8"); e("v_lshlrev_b32 v8, 2, v8"); e("v_add_u32 v9, v9, v8")
    e("v_and_b32 v8, 3, v6"); e("v_lshlrev_b32 v8, 3, v8"); e("v_add_u32 v9, v9, v8"); e(f"v_add_u32 v5, {LDS_B0}, v9")
    ACC=100
    for r in range(80): e(f"v_mov_b32 v{ACC+r}, 0")
    e("s_cmp_ge_u32 s14, 4"); e("s_cbranch_scc1 k1_wn1")
    AF=28; BF=36
    def mainloop(cols, notrans):
        lp=f"k1_loop{len(notrans)}"
        FS=[28,192]
        def reads(ks):
            o=(ks&1)*BBUF; F=FS[ks&1]; r=[]
            for m in range(2): r.append(f"ds_read_b128 v[{F+4*m}:{F+4*m+3}], v4 offset:{m*16*PA+(ks&1)*64}")
            for t,c in enumerate(cols):
                r.append(f"ds_read_b64_tr_b16 v[{F+8+4*t}:{F+8+4*t+1}], v5 offset:{o+c}")
                r.append(f"ds_read_b64_tr_b16 v[{F+8+4*t+2}:{F+8+4*t+3}], v5 offset:{o+c+4*PB}")
            return r
        for r in reads(0): e(r)
        e("s_waitcnt lgkmcnt(0)"); e("s_barrier")
        if notrans: stamp()
        e("s_mov_b32 s52, 0"); lab(lp)
        for ks in range(2):
            if ks==1: e("v_add_u32 v4, 128, v4")
            rd=reads(ks+1); F=FS[ks]; n=0
            for t in range(10):
                for m in range(2):
                    a=f"v[{F+4*m}:{F+4*m+3}]"; b=f"v[{F+8+4*t}:{F+8+4*t+3}]"; d=ACC+(t*2+m)*4
                    if t in notrans: e(f"v_mfma_f32_16x16x32_bf16 v[{d}:{d+3}], {a}, {b}, v[{d}:{d+3}]")
                    else: e(f"v_mfma_f32_16x16x32_bf16 v[{d}:{d+3}], {b}, {a}, v[{d}:{d+3}]")
                    for _ in range(2 if n<2 else 1):
                        if rd: e(rd.pop(0))
                    n+=1
                if t==6:
                    e("s_waitcnt vmcnt(4)"); bwrite(ks&1); bload(ks+4)
            e("s_waitcnt lgkmcnt(0)"); e("s_barrier")
        e("s_add_u32 s52, s52, 1"); e("s_cmp_lt_u32 s52, 7"); e(f"s_cbranch_scc1 {lp}")
        e("s_nop 7"); e("s_nop 1")
        if notrans: stamp()
    def hstore(gt, ut, fcol):
        for m in range(2):
            g=ACC+(gt*2+m)*4; u=ACC+(ut*2+m)*4
            for r in range(4): silu_mul(g+r,g+r,u+r,88)
            e(f"v_cvt_pk_bf16_f32 v{g}, v{g}, v{g+1}"); e(f"v_cvt_pk_bf16_f32 v{g+1}, v{g+2}, v{g+3}")
            e(f"buffer_store_dwordx2 v[{g}:{g+1}], v90, s[32:35], 0 offen offset:{fcol*2}" if m==0 else
              f"buffer_store_dwordx2 v[{g}:{g+1}], v91, s[32:35], 0 offen offset:{fcol*2}")
    def epi_common():
        e("v_and_b32 v6, 15, v1"); e("v_lshrrev_b32 v7, 4, v1")
        e("s_lshl_b32 s46, s3, 7"); e("s_lshl_b32 s47, s49, 5"); e("s_add_u32 s46, s46, s47")
        e("v_add_u32 v8, s46, v6"); e("v_mul_u32_u24 v90, 3584, v8"); e("v_lshlrev_b32 v9, 3, v7"); e("v_add_u32 v90, v90, v9")
        e("s_mul_i32 s47, s2, 224"); e("v_add_u32 v90, s47, v90"); e(f"v_add_u32 v91, {16*3584}, v90")
    mainloop([0,32,64,96,128,160,192,224,416,448], {2,3,4,5})
    epi_common()
    hstore(6,8,0); hstore(7,9,16)
    e("v_mul_u32_u24 v92, 896, v8"); e("v_add_u32 v92, v92, v9"); e("s_mul_i32 s47, s2, 56"); e("v_add_u32 v92, s47, v92")
    e(f"v_add_u32 v92, {WS_PQ}, v92"); e("v_add_u32 v93, 14336, v92")
    for t in range(2):
        for m in range(2):
            d=ACC+(t*2+m)*4
            for r in range(4): phi(d+r,88)
            e(f"v_cvt_pk_bf16_f32 v{d}, v{d}, v{d+1}"); e(f"v_cvt_pk_bf16_f32 v{d+1}, v{d+2}, v{d+3}")
            if t==1:
                e("v_cmp_gt_u32 vcc, 48, v1"); e("s_and_saveexec_b64 s[38:39], vcc")
            e(f"buffer_store_dwordx2 v[{d}:{d+1}], v{92+m}, s[32:35], 0 offen offset:{t*32}")
            if t==1: e("s_mov_b64 exec, s[38:39]")
    for t in (2,3):
        for m in range(2):
            d=ACC+(t*2+m)*4
            for r in range(4): phi(d+r,88)
    e("v_and_b32 v6, 15, v1"); e("v_cmp_eq_u32 vcc, 12, v6"); e("s_nop 1")
    for m in range(2):
        d=ACC+(5*2+m)*4
        for r in range(4): e(f"v_cndmask_b32 v{d+r}, v{d+r}, 1.0, vcc")
    for t in range(2,6):
        f=AF+(t-2)*4
        for m in range(2):
            d=ACC+(t*2+m)*4
            e(f"v_cvt_pk_bf16_f32 v{f+2*m}, v{d}, v{d+1}"); e(f"v_cvt_pk_bf16_f32 v{f+2*m+1}, v{d+2}, v{d+3}")
    for r in range(16): e(f"v_mov_b32 v{48+r}, 0")
    e("s_nop 1")
    for dt in range(2):
        for et in range(2):
            d=48+(dt*2+et)*4
            e(f"v_mfma_f32_16x16x32_bf16 v[{d}:{d+3}], v[{AF+dt*4}:{AF+dt*4+3}], v[{AF+8+et*4}:{AF+8+et*4+3}], v[{d}:{d+3}]")
    e("s_nop 7"); e("s_nop 1")
    e("v_lshrrev_b32 v7, 4, v1"); e("v_lshlrev_b32 v7, 9, v7"); e("v_lshlrev_b32 v6, 2, v6"); e("v_add_u32 v7, v7, v6")
    e("s_lshl_b32 s47, s49, 12"); e("v_add_u32 v7, s47, v7"); e(f"v_add_u32 v7, {LDS_B0}, v7")
    for dt in range(2):
        for et in range(2):
            d=48+(dt*2+et)*4
            for r in range(4): e(f"ds_write_b32 v7, v{d+r} offset:{dt*2048+r*128+et*64}")
    e("s_branch k1_red")
    lab("k1_wn1")
    mainloop([256,288,320,352,384,480,512,544,576,608], set())
    epi_common()
    for t in range(5): hstore(t,5+t,32+16*t)
    lab("k1_red")
    e("s_waitcnt lgkmcnt(0)"); e("s_barrier")
    e("s_cmp_ge_u32 s14, 4"); e("s_cbranch_scc1 k1_done")
    e(f"v_lshlrev_b32 v7, 4, v0"); e(f"v_add_u32 v8, {LDS_B0}, v7")
    for w in range(4): e(f"ds_read_b128 v[{48+4*w}:{51+4*w}], v8 offset:{w*4096}")
    e("s_waitcnt lgkmcnt(0)")
    for r in range(4):
        e(f"v_add_f32 v{48+r}, v{48+r}, v{52+r}"); e(f"v_add_f32 v{56+r}, v{56+r}, v{60+r}"); e(f"v_add_f32 v{48+r}, v{48+r}, v{56+r}")
    e("s_lshl_b32 s46, s3, 4"); e("s_add_u32 s46, s46, s2"); e("s_lshl_b32 s46, s46, 12"); e(f"s_add_u32 s46, s46, {WS_KVP}")
    e("buffer_store_dwordx4 v[48:51], v7, s[32:35], s46 offen")
    e("s_waitcnt vmcnt(0)"); stamp(); stamp_out(1)
    lab("k1_done"); e("s_endpgm")

def kr():
    lab("kr_kernel_body")
    e("s_cmp_ge_u32 s2, 256"); e("s_cbranch_scc1 kr_done"); e("s_sub_u32 s2, s2, 224"); e("s_and_b32 s60, s2, 1"); e("s_lshr_b32 s2, s2, 1")
    e("v_cmp_gt_u32 vcc, 256, v0"); e("s_nop 4"); e("s_cbranch_vccz kr_done")
    e("s_load_dwordx2 s[4:5], s[0:1], 16"); e("s_load_dwordx2 s[12:13], s[0:1], 72")
    e("s_waitcnt lgkmcnt(0)")
    srd(16,4,401408); srd(32,12,0x10000000)
    e("v_lshlrev_b32 v1, 4, v0")
    e("s_lshl_b32 s3, s2, 12"); e(f"s_add_u32 s3, s3, {WS_KVP}")
    for m in range(16):
        e(f"buffer_load_dwordx4 v[{8+4*m}:{11+4*m}], v1, s[32:35], s3 offen"); e("s_add_u32 s3, s3, 0x10000")
    e("v_lshlrev_b32 v2, 2, v0"); e("s_mul_i32 s3, s2, 25088")
    for k in range(28): e(f"buffer_load_dword v{80+k}, v2, s[16:19], s3 offen offset:{k*896}" if k<4 else
                          f"buffer_load_dword v{80+k}, v{3}, s[16:19], s3 offen offset:{(k%4)*896}")  if (k<4 or True) and (k%4 or k==0 or not e(f"v_add_u32 v3, {(k//4)*4*896}, v2")) else None
    e("s_waitcnt vmcnt(28)")
    for m in range(1,16):
        for r in range(4): e(f"v_add_f32 v{8+r}, v{8+r}, v{8+4*m+r}")
    e("v_cvt_pk_bf16_f32 v12, v8, v9"); e("v_cvt_pk_bf16_f32 v13, v10, v11")
    e("v_lshlrev_b32 v8, 16, v12"); e("v_and_b32 v9, 0xffff0000, v12"); e("v_lshlrev_b32 v10, 16, v13"); e("v_and_b32 v11, 0xffff0000, v13")
    e("ds_write_b128 v1, v[8:11]"); e("s_waitcnt lgkmcnt(0)"); e("s_barrier")
    e("v_lshlrev_b32 v4, 7, v0"); e("ds_read_b32 v5, v4 offset:112")
    e("s_mul_i32 s3, s2, 112"); e(f"s_add_u32 s3, s3, {WS_Z}")
    e("v_cmp_gt_u32 vcc, 28, v0"); e("s_and_saveexec_b64 s[38:39], vcc"); e("s_cbranch_execz kr_nz")
    e("s_waitcnt lgkmcnt(0)"); e("buffer_store_dword v5, v2, s[32:35], s3 offen sc1")
    lab("kr_nz"); e("s_mov_b64 exec, s[38:39]")
    e("s_waitcnt vmcnt(0) lgkmcnt(0)")
    for k in range(28):
        e(f"v_lshlrev_b32 v{112+k}, 16, v{80+k}"); e(f"v_and_b32 v{80+k}, 0xffff0000, v{80+k}")
    e("s_mul_i32 s61, s60, 1792"); e("v_mov_b32 v4, s61")
    e("s_mul_i32 s3, s2, 25088"); e(f"s_add_u32 s3, s3, {WS_KW}"); e("s_mul_i32 s61, s60, 12544"); e("s_add_u32 s3, s3, s61")
    e("v_cmp_gt_u32 vcc, 224, v0"); e("s_and_saveexec_b64 s[38:39], vcc")
    for d in range(14):
        for q in range(7): e(f"ds_read_b128 v[{40+4*q}:{43+4*q}], v4 offset:{d*128+q*16}")
        e("s_waitcnt lgkmcnt(0)")
        e(f"v_mul_f32 v6, v40, v112"); e(f"v_mul_f32 v7, v40, v80")
        for k in range(1,28):
            e(f"v_fmac_f32 v6, v{40+k}, v{112+k}"); e(f"v_fmac_f32 v7, v{40+k}, v{80+k}")
        e("v_cvt_pk_bf16_f32 v6, v6, v7")
        e(f"buffer_store_dword v6, v2, s[32:35], s3 offen sc1"); e("s_add_u32 s3, s3, 896"); e("s_nop 1")
    e("s_mov_b64 exec, -1"); e("s_waitcnt vmcnt(0)"); e("s_barrier")
    e("s_load_dwordx2 s[56:57], s[0:1], 64"); e("s_waitcnt lgkmcnt(0)")
    e("s_mov_b32 s58, 256"); e("s_mov_b32 s59, 0x00020000"); e("v_mov_b32 v5, 1"); e("v_mov_b32 v4, 0")
    e("v_cmp_eq_u32 vcc, 0, v0"); e("s_and_saveexec_b64 s[38:39], vcc"); e("s_cbranch_execz kr_done")
    e("buffer_atomic_add v5, v4, s[56:59], 0 offen sc1"); e("s_waitcnt vmcnt(0)")
    lab("kr_done"); e("s_endpgm")

P2=160; P3=192
CH=64*P2+64*P2+0
A2P=928; A2OFF=4*(64*P2+64*P3)
def a2prep():
    e("s_load_dwordx2 s[56:57], s[0:1], 64"); e("s_waitcnt lgkmcnt(0)")
    e("s_mov_b32 s58, 256"); e("s_mov_b32 s59, 0x00020000"); e("v_mov_b32 v34, 0")
    lab("k23_poll")
    e("buffer_load_dword v35, v34, s[56:59], 0 offen sc1"); e("s_waitcnt vmcnt(0)")
    e("v_readfirstlane_b32 s54, v35"); e("s_nop 3"); e("s_cmp_ge_u32 s54, 32"); e("s_cbranch_scc1 k23_go")
    e("s_sleep 2"); e("s_branch k23_poll")
    lab("k23_go")
    e("v_and_b32 v36, 15, v0"); e("v_mul_u32_u24 v37, 56, v36"); e("v_lshrrev_b32 v38, 4, v0")
    e("v_lshlrev_b32 v34, 1, v37"); e(f"s_mov_b32 s51, {WS_Z}")
    for q in range(7): e(f"buffer_load_dwordx4 v[{116+4*q}:{119+4*q}], v34, s[32:35], s51 offen offset:{q*16} sc1")
    e(f"s_mov_b32 s55, {WS_PQ}")
    PQ=[232,20]
    for i in range(2):
        e(f"v_add_u32 v39, {32*i}, v38"); e("v_add_u32 v34, s46, v39"); e("v_mul_u32_u24 v34, 896, v34"); e("v_add_u32 v34, v34, v37")
        for q in range(7): e(f"buffer_load_dwordx2 v[{PQ[i]+2*q}:{PQ[i]+2*q+1}], v34, s[32:35], s55 offen offset:{q*8}")
    e("s_waitcnt vmcnt(0)")
    for i in range(2):
        b=PQ[i]
        e("v_mov_b32 v88, 0x358637bd"); e("v_mov_b32 v89, 0")
        for k in range(14):
            e(f"v_lshlrev_b32 v90, 16, v{b+k}"); e(f"v_and_b32 v91, 0xffff0000, v{b+k}")
            e(f"v_fmac_f32 v88, v90, v{116+2*k}"); e(f"v_fmac_f32 v89, v91, v{117+2*k}")
        e("v_add_f32 v88, v88, v89"); e("v_rcp_f32 v88, v88"); e("s_nop 0")
        for k in range(14):
            e(f"v_lshlrev_b32 v90, 16, v{b+k}"); e(f"v_and_b32 v91, 0xffff0000, v{b+k}")
            e("v_mul_f32 v90, v90, v88"); e("v_mul_f32 v91, v91, v88")
            e(f"v_cvt_pk_bf16_f32 v{b+k}, v90, v91")
        e(f"v_add_u32 v39, {32*i}, v38"); e(f"v_mul_u32_u24 v34, {A2P}, v39"); e("v_add_u32 v34, v34, v37"); e(f"v_add_u32 v34, {A2OFF}, v34")
        for q in range(7): e(f"ds_write_b64 v34, v[{b+2*q}:{b+2*q+1}] offset:{q*8}")

def k23():
    kernel_head("k23_kernel")
    e("s_cmp_ge_u32 s2, 224"); e("s_cbranch_scc1 kr_kernel_body"); stamp()
    e("v_lshrrev_b32 v1, 6, v0"); e("s_nop 0"); e("v_readfirstlane_b32 s53, v1"); e("s_nop 3"); e("s_add_u32 s53, s53, s2")
    e("s_load_dwordx2 s[4:5], s[0:1], 0"); e("s_load_dwordx2 s[6:7], s[0:1], 48")
    e("s_load_dwordx2 s[8:9], s[0:1], 56"); e("s_load_dwordx2 s[12:13], s[0:1], 72")
    e("s_and_b32 s3, s2, 7"); e("s_lshr_b32 s2, s2, 3")
    e("s_mul_i32 s14, s2, 9363"); e("s_lshr_b32 s14, s14, 16")
    e("s_mul_i32 s15, s14, 7"); e("s_sub_u32 s2, s2, s15")
    e("s_lshl_b32 s14, s14, 3"); e("s_add_u32 s3, s3, s14")
    e("v_lshrrev_b32 v1, 6, v0"); e("s_nop 0"); e("v_readfirstlane_b32 s14, v1"); e("v_and_b32 v1, 63, v0")
    e("s_waitcnt lgkmcnt(0)")
    srd(16,4,1835008); srd(20,6,1605632); srd(24,8,1835008); srd(32,12,0x10000000)
    srd(28,12,401408,WS_KW)
    BOFF=64*P2; BUF=64*P2+64*P3
    e("v_lshrrev_b32 v6, 3, v0"); e("v_and_b32 v7, 7, v0"); e("v_lshlrev_b32 v7, 4, v7")
    e("s_lshl_b32 s46, s3, 6"); e("v_add_u32 v8, s46, v6"); e("v_mul_u32_u24 v2, 3584, v8"); e("v_add_u32 v2, v2, v7")
    e("v_mul_u32_u24 v3, 896, v6"); e("v_add_u32 v3, v3, v7"); e("s_lshl_b32 s47, s2, 7"); e("v_add_u32 v3, s47, v3")
    e(f"v_mul_u32_u24 v4, {P2}, v6"); e("v_add_u32 v4, v4, v7")
    e("v_and_b32 v8, 8, v6"); e("v_lshlrev_b32 v8, 2, v8"); e(f"v_mul_u32_u24 v5, {P3}, v6"); e("v_add_u32 v5, v5, v7"); e("v_add_u32 v5, v5, v8"); e(f"v_add_u32 v5, {BOFF}, v5")
    e("s_and_b32 s49, s14, 3"); e("s_lshr_b32 s50, s14, 2")
    e("v_and_b32 v6, 15, v1"); e("v_lshrrev_b32 v7, 4, v1")
    e("s_lshl_b32 s47, s49, 4"); e("v_add_u32 v8, s47, v6"); e(f"v_mul_u32_u24 v9, {P2}, v8"); e("v_lshlrev_b32 v10, 4, v7"); e("v_add_u32 v10, v9, v10")
    e(f"v_mul_u32_u24 v9, {A2P}, v8"); e("v_lshlrev_b32 v12, 4, v7"); e("v_add_u32 v12, v9, v12"); e(f"v_add_u32 v12, {A2OFF}, v12")
    e("v_lshlrev_b32 v8, 3, v7"); e("v_lshrrev_b32 v9, 2, v6"); e("v_add_u32 v8, v8, v9")
    e(f"v_mul_u32_u24 v9, {P3}, v8"); e("v_and_b32 v8, 8, v8"); e("v_lshlrev_b32 v8, 2, v8"); e("v_add_u32 v9, v9, v8")
    e("v_and_b32 v8, 3, v6"); e("v_lshlrev_b32 v8, 3, v8"); e("v_add_u32 v9, v9, v8"); e("s_lshl_b32 s47, s50, 6"); e("v_add_u32 v9, s47, v9"); e(f"v_add_u32 v11, {BOFF}, v9")
    for a,b in ((4,16),(5,17),(10,18),(11,19)): e(f"v_add_u32 v{b}, {2*BUF}, v{a}")
    NC=28+7
    ST=152
    def gload(c):
        s=ST+(c%4)*8
        if c<28:
            if c==0: e("s_mov_b32 s44, 0"); e("s_mov_b32 s45, 0")
            else: e("s_add_u32 s44, s44, 128"); e(f"s_add_u32 s45, s45, {64*896}")
            e(f"buffer_load_dwordx4 v[{s}:{s+3}], v2, s[32:35], s44 offen")
            e(f"buffer_load_dwordx4 v[{s+4}:{s+7}], v3, s[20:23], s45 offen")
        else:
            e(f"s_mov_b32 s45, {(c-28)*64*896}")
            e(f"buffer_load_dwordx4 v[{s+4}:{s+7}], v3, s[28:31], s45 offen sc1")
    def gwrite(c):
        s=ST+(c%4)*8; o=(c&1)*BUF; hi=(c>>1)&1
        if c<28: e(f"ds_write_b128 v{16 if hi else 4}, v[{s}:{s+3}] offset:{o}")
        e(f"ds_write_b128 v{17 if hi else 5}, v[{s+4}:{s+7}] offset:{o}")
    def nld(c): return 0 if c>=NC else (2 if c<28 else 1)
    gload(0); gload(1); gload(2); gload(3)
    for r in range(16): e(f"v_mov_b32 v{100+r}, 0")
    e("s_waitcnt vmcnt(4)"); gwrite(0); gwrite(1); gload(4); gload(5)
    e("s_waitcnt vmcnt(4)"); gwrite(2); gwrite(3); gload(6); gload(7)
    e("s_waitcnt lgkmcnt(0)"); e("s_barrier")
    FS=[40,184]
    def reads(S):
        r=[]
        for c in (2*S,2*S+1):
            if c>=NC: continue
            o=(c&1)*BUF; hi=(c>>1)&1; F=FS[S&1]+(c&1)*24
            for ks in range(2):
                if c<28: r.append(f"ds_read_b128 v[{F+4*ks}:{F+4*ks+3}], v{18 if hi else 10} offset:{o+ks*64}")
                else: r.append(f"ds_read_b128 v[{F+4*ks}:{F+4*ks+3}], v12 offset:{(c-28)*128+ks*64}")
                for t in range(2):
                    b=F+8+ks*8+t*4
                    r.append(f"ds_read_b64_tr_b16 v[{b}:{b+1}], v{19 if hi else 11} offset:{o+ks*32*P3+t*32}")
                    r.append(f"ds_read_b64_tr_b16 v[{b+2}:{b+3}], v{19 if hi else 11} offset:{o+ks*32*P3+t*32+4*P3}")
        return r
    for r in reads(0): e(r)
    e("s_waitcnt lgkmcnt(0)"); e("s_barrier")
    stamp(); e("s_mov_b32 s52, 0"); lab("k23_loop")
    for S in [0,1]+list(range(10,18)):
        if S==10: e("s_add_u32 s52, s52, 1"); e("s_cmp_lt_u32 s52, 5"); e("s_cbranch_scc1 k23_loop"); stamp(); a2prep()
        rd=reads(S+1)
        c0=2*S+4
        if c0<NC:
            e(f"s_waitcnt vmcnt({nld(c0+2)+nld(c0+3)})"); gwrite(c0)
            if c0+1<NC: gwrite(c0+1)
            if c0+4<NC: gload(c0+4)
            if c0+5<NC: gload(c0+5)
        for c in (2*S,2*S+1):
            if c>=NC: continue
            acc=100 if c<28 else 108; F=FS[S&1]+(c&1)*24
            for ks in range(2):
                for t in range(2):
                    b=F+8+ks*8+t*4
                    e(f"v_mfma_f32_16x16x32_bf16 v[{acc+4*t}:{acc+4*t+3}], v[{b}:{b+3}], v[{F+4*ks}:{F+4*ks+3}], v[{acc+4*t}:{acc+4*t+3}]")
                    for _ in range(3):
                        if rd: e(rd.pop(0))
        while rd: e(rd.pop(0))
        e("s_waitcnt lgkmcnt(0)"); e("s_barrier")
    e("s_nop 7"); e("s_nop 1")
    stamp()
    e("v_and_b32 v6, 15, v1"); e("v_lshrrev_b32 v7, 4, v1")
    e("s_lshl_b32 s47, s49, 4"); e("s_add_u32 s47, s47, s46"); e("v_add_u32 v8, s47, v6"); e("v_mul_u32_u24 v8, 896, v8")
    e("v_lshlrev_b32 v9, 3, v7"); e("v_add_u32 v8, v8, v9"); e("s_lshl_b32 s47, s2, 7"); e("s_lshl_b32 s48, s50, 6"); e("s_add_u32 s47, s47, s48"); e("v_add_u32 v8, s47, v8")
    for t in range(2): e(f"buffer_load_dwordx2 v[{20+2*t}:{21+2*t}], v8, s[16:19], 0 offen offset:{t*32}")
    e("v_mov_b32 v30, 1.0")
    for r in range(8): silu_mul(100+r,100+r,30,31)
    e("s_waitcnt vmcnt(0)")
    for t in range(2):
        e(f"v_lshlrev_b32 v24, 16, v{20+2*t}"); e(f"v_and_b32 v25, 0xffff0000, v{20+2*t}")
        e(f"v_lshlrev_b32 v26, 16, v{21+2*t}"); e(f"v_and_b32 v27, 0xffff0000, v{21+2*t}")
        for r in range(4): e(f"v_fmac_f32 v{24+r}, v{100+4*t+r}, v{108+4*t+r}")
        e("v_cvt_pk_bf16_f32 v24, v24, v25"); e("v_cvt_pk_bf16_f32 v25, v26, v27")
        e(f"buffer_store_dwordx2 v[24:25], v8, s[24:27], 0 offen offset:{t*32}"); e("s_nop 1")
    e("s_waitcnt vmcnt(0)"); stamp(); stamp_out(2)
    lab("k23_done"); e("s_endpgm")

hdr=open(f"cdna_kernels/{NAME}.s.ref").read().split("; @launch")[0]
k1(); k23(); kr()
LDS1=LDS_B0+2*BBUF; LDS23=A2OFF+64*A2P
out=hdr+f"; @launch kernel=k1_kernel grid=(256,1,1) block=(512,1,1) lds={LDS1}\n"
out+=f"; @launch kernel=k23_kernel grid=(256,1,1) block=(512,1,1) lds={LDS23}\n"
out+='.amdgcn_target "amdgcn-amd-amdhsa--gfx950"\n.text\n'+"\n".join(L)+"\n"
out+='.section .rodata,"a"\n'
for k,v in (("k1_kernel",240),("k23_kernel",256)):
    out+=f""".p2align 6
.amdhsa_kernel {k}
  .amdhsa_next_free_vgpr {v}
  .amdhsa_next_free_sgpr 102
  .amdhsa_accum_offset {v}
  .amdhsa_group_segment_fixed_size 0
  .amdhsa_kernarg_size 80
  .amdhsa_user_sgpr_count 2
  .amdhsa_user_sgpr_kernarg_segment_ptr 1
  .amdhsa_system_sgpr_workgroup_id_x 1
.end_amdhsa_kernel
"""
open(f"cdna_kernels/{NAME}{X}.s","w").write(out)
print(LDS1,LDS23,len(out))
for d,m,n in ((14,4682,512),(21,3121,1024),(7,9363,64),(96,683,512),(3,0x5556,96)):
    assert all((t*m)>>16==t//d for t in range(n)),d
```

```python
import sys
NAME="recurrent_scan__linear_attn_block__glu_gated_swiglu__prompt"
L=[]
import os
X=os.environ.get("X","")
def e(s):
    if "m" in X and s.startswith("v_mfma"): return
    if "r" in X and s.startswith("ds_read_b64_tr"): return
    if "w" in X and s.startswith("ds_write"): return
    if "g" in X and s.startswith("buffer_load"): return
    if "b" in X and s.startswith("s_barrier"): return
    if "s" in X and s.startswith("buffer_store"): return
    if "t" in X and (s.startswith("v_exp") or s.startswith("v_rcp")): return
    L.append("    "+s)
def lab(s): L.append(s+":")
WS_H=0; WS_PQ=0x800000; WS_KVP=0xA00000; WS_KW=0xC00000; WS_Z=0xD00000
LOG2E="0x3fb8aa3b"

def srd(d, lo, nbytes, off=0):
    if off:
        e(f"s_add_u32 s{d}, s{lo}, {off}"); e(f"s_addc_u32 s{d+1}, s{lo+1}, 0")
    else:
        e(f"s_mov_b32 s{d}, s{lo}"); e(f"s_mov_b32 s{d+1}, s{lo+1}")
    e(f"s_mov_b32 s{d+2}, {nbytes}"); e(f"s_mov_b32 s{d+3}, 0x00020000")

NST=[0]
def stamp():
    if "T" not in X: return
    i=NST[0]; NST[0]+=1
    e(f"s_memtime s[{70+2*i}:{71+2*i}]"); e("s_waitcnt lgkmcnt(0)")
def stamp_out(n):
    if "T" not in X: return
    e("s_load_dwordx2 s[64:65], s[0:1], 64"); e("s_waitcnt lgkmcnt(0)")
    e("s_mov_b32 s66, 256"); e("s_mov_b32 s67, 0x00020000")
    e("v_mov_b32 v1, 0")
    e("s_cmp_lg_u32 s53, 0"); e("s_cbranch_scc1 stamp_skip%d"%n)
    for i in range(NST[0]):
        e(f"s_sub_u32 s68, s{70+2*i}, s70"); e("v_mov_b32 v2, s68"); e(f"buffer_store_dword v2, v1, s[64:67], 0 offen offset:{4*i}")
    lab("stamp_skip%d"%n); NST[0]=0
def kernel_head(name):
    L.append(f".globl {name}"); L.append(".p2align 8"); L.append(f".type {name},@function"); lab(name)

def silu_mul(dst, g, u, t):
    e(f"v_mul_f32 v{t}, 0xbfb8aa3b, v{g}")
    e(f"v_exp_f32 v{t}, v{t}")
    e("s_nop 0")
    e(f"v_add_f32 v{t}, 1.0, v{t}")
    e(f"v_rcp_f32 v{t}, v{t}")
    e("s_nop 0")
    e(f"v_mul_f32 v{t}, v{t}, v{g}")
    e(f"v_mul_f32 v{dst}, v{t}, v{u}")

def silu_mul4(g, u, t, ustep=1):
    for r in range(4): e(f"v_mul_f32 v{t+r}, 0xbfb8aa3b, v{g+r}")
    for r in range(4): e(f"v_exp_f32 v{t+r}, v{t+r}")
    for r in range(4): e(f"v_add_f32 v{t+r}, 1.0, v{t+r}")
    for r in range(4): e(f"v_rcp_f32 v{t+r}, v{t+r}")
    for r in range(4): e(f"v_mul_f32 v{t+r}, v{t+r}, v{g+r}")
    for r in range(4): e(f"v_mul_f32 v{g+r}, v{t+r}, v{u+r*ustep}")
def phi4(x, t):
    for r in range(4): e(f"v_mul_f32 v{t+r}, {LOG2E}, v{x+r}")
    for r in range(4): e(f"v_exp_f32 v{t+r}, v{t+r}")
    for r in range(4): e(f"v_cmp_lt_f32 s[{62+2*r}:{63+2*r}], 0, v{x+r}")
    for r in range(4): e(f"v_add_f32 v{x+r}, 1.0, v{x+r}")
    for r in range(4): e(f"v_cndmask_b32 v{x+r}, v{t+r}, v{x+r}, s[{62+2*r}:{63+2*r}]")
    for r in range(4): e(f"v_add_f32 v{x+r}, 0x358637bd, v{x+r}")
def phi(x, t):
    e(f"v_mul_f32 v{t}, {LOG2E}, v{x}")
    e(f"v_exp_f32 v{t}, v{t}")
    e(f"v_cmp_lt_f32 vcc, 0, v{x}")
    e(f"v_add_f32 v{x}, 1.0, v{x}")
    e("s_nop 0")
    e(f"v_cndmask_b32 v{x}, v{t}, v{x}, vcc")
    e(f"v_add_f32 v{x}, 0x358637bd, v{x}")

PA=928; PB=704; BBUF=32*PB; LDS_B0=128*PA
def k1():
    kernel_head("k1_kernel")
    e("s_cmp_ge_u32 s2, 256"); e("s_cbranch_scc1 k1_done"); stamp()
    e("v_lshrrev_b32 v1, 6, v0"); e("s_nop 0"); e("v_readfirstlane_b32 s53, v1"); e("s_nop 3"); e("s_add_u32 s53, s53, s2")
    e("s_load_dwordx4 s[4:7], s[0:1], 0")
    e("s_load_dwordx4 s[8:11], s[0:1], 32")
    e("s_load_dwordx2 s[12:13], s[0:1], 72")
    e("s_lshr_b32 s3, s2, 4")
    e("s_and_b32 s2, s2, 15")
    e("v_lshrrev_b32 v1, 6, v0"); e("s_nop 0"); e("v_readfirstlane_b32 s14, v1")
    e("v_and_b32 v1, 63, v0")
    e("s_waitcnt lgkmcnt(0)")
    srd(16,4,1835008); srd(20,6,1204224); srd(24,8,1605632); srd(28,10,1605632)
    srd(32,12,0x10000000)
    e("v_mov_b32 v4, 0"); e("v_mov_b32 v5, 0")
    e("s_mov_b32 s36, 0x2ab")
    e("v_mul_lo_u32 v6, v0, s36"); e("v_lshrrev_b32 v6, 16, v6")
    e("v_mul_u32_u24 v7, 96, v6"); e("v_sub_u32 v7, v0, v7")
    e("s_mov_b32 s36, 0x5556"); e("v_mul_lo_u32 v8, v7, s36"); e("v_lshrrev_b32 v8, 16, v8")
    e("v_mul_u32_u24 v9, 3, v8"); e("v_sub_u32 v9, v7, v9")
    e(f"v_mul_u32_u24 v10, {PB}, v8"); e("v_and_b32 v11, 8, v8"); e("v_lshlrev_b32 v11, 2, v11")
    e("v_add_u32 v10, v10, v11"); e("v_lshlrev_b32 v11, 6, v9"); e("v_add_u32 v10, v10, v11")
    e(f"v_mul_u32_u24 v11, {BBUF}, v6"); e("v_add_u32 v10, v10, v11"); e(f"v_add_u32 v10, {LDS_B0+56}, v10")
    e("v_cmp_gt_u32 vcc, 192, v0"); e("s_and_saveexec_b64 s[38:39], vcc"); e("s_cbranch_execz k1_nz")
    e("ds_write_b64 v10, v[4:5]")
    lab("k1_nz"); e("s_mov_b64 exec, s[38:39]")
    e("s_mov_b32 s36, 4682"); e("v_mul_lo_u32 v6, v0, s36"); e("v_lshrrev_b32 v6, 16, v6")
    e("v_mul_u32_u24 v7, 14, v6"); e("v_sub_u32 v7, v0, v7")
    e("v_mul_u32_u24 v2, 3584, v6"); e("v_lshlrev_b32 v8, 4, v7"); e("v_add_u32 v2, v2, v8")
    e("s_mul_i32 s36, s2, 224"); e("v_add_u32 v2, s36, v2")
    e(f"v_mul_u32_u24 v3, {PB}, v6"); e("v_and_b32 v9, 8, v6"); e("v_lshlrev_b32 v9, 2, v9")
    e("v_add_u32 v3, v3, v9"); e("v_add_u32 v3, v3, v8"); e(f"v_add_u32 v3, {LDS_B0+192}, v3")
    def qkv_off(idx, vg, vl):
        e("s_mov_b32 s36, 3121"); e(f"v_mul_lo_u32 v6, v{idx}, s36"); e("v_lshrrev_b32 v6, 16, v6")
        e("v_mul_u32_u24 v7, 21, v6"); e(f"v_sub_u32 v7, v{idx}, v7")
        e("s_mov_b32 s36, 9363"); e("v_mul_lo_u32 v8, v7, s36"); e("v_lshrrev_b32 v8, 16, v8")
        e("v_mul_u32_u24 v9, 7, v8"); e("v_sub_u32 v9, v7, v9")
        e(f"v_mul_u32_u24 v{vg}, 2688, v6"); e("v_mul_u32_u24 v10, 896, v8"); e(f"v_add_u32 v{vg}, v{vg}, v10")
        e("v_lshlrev_b32 v10, 3, v9"); e(f"v_add_u32 v{vg}, v{vg}, v10")
        e("s_mul_i32 s36, s2, 56"); e(f"v_add_u32 v{vg}, s36, v{vg}")
        e(f"v_mul_u32_u24 v{vl}, {PB}, v6"); e("v_and_b32 v11, 8, v6"); e("v_lshlrev_b32 v11, 2, v11")
        e(f"v_add_u32 v{vl}, v{vl}, v11"); e(f"v_add_u32 v{vl}, v{vl}, v10"); e("v_lshlrev_b32 v11, 6, v8")
        e(f"v_add_u32 v{vl}, v{vl}, v11"); e(f"v_add_u32 v{vl}, {LDS_B0}, v{vl}")
    qkv_off(0, 12, 13)
    e("v_sub_u32 v14, 1023, v0"); qkv_off(14, 14, 15)
    e("v_cmp_gt_u32 vcc, 448, v0"); e("s_mov_b64 s[40:41], vcc")
    e("v_cmp_lt_u32 vcc, 351, v0"); e("s_mov_b64 s[42:43], vcc")
    def bload(ks):
        q=16 if ks%2==0 else 180
        if ks==0: e("s_mov_b32 s44, 0"); e("s_mov_b32 s45, 0")
        else: e(f"s_add_u32 s44, s44, {32*3584}"); e(f"s_add_u32 s45, s45, {32*2688}")
        e("s_mov_b64 exec, s[40:41]")
        e(f"buffer_load_dwordx4 v[{q}:{q+3}], v2, s[24:27], s44 offen")
        e(f"buffer_load_dwordx4 v[{q+4}:{q+7}], v2, s[28:31], s44 offen")
        e("s_mov_b64 exec, s[42:43]")
        e(f"buffer_load_dwordx2 v[{q+10}:{q+11}], v14, s[20:23], s45 offen")
        e("s_mov_b64 exec, -1")
        e(f"buffer_load_dwordx2 v[{q+8}:{q+9}], v12, s[20:23], s45 offen")
    def bwrite(buf):
        o=buf*BBUF; q=16 if buf==0 else 180
        e("s_mov_b64 exec, s[40:41]")
        e(f"ds_write_b128 v3, v[{q}:{q+3}] offset:{o}")
        e(f"ds_write_b128 v3, v[{q+4}:{q+7}] offset:{o+224}")
        e("s_mov_b64 exec, s[42:43]")
        e(f"ds_write_b64 v15, v[{q+10}:{q+11}] offset:{o}")
        e("s_mov_b64 exec, -1")
        e(f"ds_write_b64 v13, v[{q+8}:{q+9}] offset:{o}")
    bload(0); bload(1)
    e("s_lshl_b32 s46, s3, 7"); e("s_lshl_b32 s47, s14, 4"); e("s_add_u32 s46, s46, s47")
    e("v_lshrrev_b32 v6, 3, v1"); e("v_add_u32 v7, s46, v6")
    e("v_mul_u32_u24 v7, 896, v7"); e("v_and_b32 v8, 7, v1"); e("v_lshlrev_b32 v8, 4, v8"); e("v_add_u32 v7, v7, v8")
    for p in range(2):
        if p: e("v_add_u32 v7, 7168, v7")
        for i in range(7):
            e(f"buffer_load_dwordx4 v[{32+p*28+i*4}:{35+p*28+i*4}], v7, s[16:19], 0 offen offset:{i*128}")
    e("v_add_u32 v9, s47, v6"); e(f"v_mul_u32_u24 v9, {PA}, v9"); e("v_add_u32 v9, v9, v8")
    e("s_mov_b32 s48, 0x3f803f80")
    for p in range(2):
        b=32+p*28
        e(f"s_waitcnt vmcnt({7*(1-p)})")
        if p==0: stamp()
        e("v_mov_b32 v10, 0"); e("v_mov_b32 v11, 0")
        for r in range(28):
            e(f"v_dot2_f32_bf16 v10, v{b+r}, s48, v10")
            e(f"v_dot2_f32_bf16 v11, v{b+r}, v{b+r}, v11")
        for x in (1,2,4):
            e(f"ds_swizzle_b32 v88, v10 offset:{(x<<10)|0x1f}")
            e(f"ds_swizzle_b32 v89, v11 offset:{(x<<10)|0x1f}")
            e("s_waitcnt lgkmcnt(0)")
            e("v_add_f32 v10, v10, v88"); e("v_add_f32 v11, v11, v89")
        e("v_mul_f32 v10, 0x3b124925, v10")
        e("v_mul_f32 v11, 0x3b124925, v11")
        e("v_fma_f32 v11, -v10, v10, v11"); e("v_max_f32 v11, 0, v11")
        e("v_add_f32 v11, 0x3727c5ac, v11")
        e("v_rsq_f32 v11, v11"); e("s_nop 0")
        e("v_mul_f32 v10, v10, v11"); e("v_sub_f32 v10, 0, v10")
        for r in range(28):
            e(f"v_lshlrev_b32 v88, 16, v{b+r}"); e(f"v_and_b32 v89, 0xffff0000, v{b+r}")
            e("v_fma_f32 v88, v88, v11, v10"); e("v_fma_f32 v89, v89, v11, v10")
            e(f"v_cvt_pk_bf16_f32 v{b+r}, v88, v89")
        for i in range(7):
            e(f"ds_write_b128 v9, v[{b+4*i}:{b+4*i+3}] offset:{p*8*PA+i*128}")
    e("s_waitcnt vmcnt(4)"); bwrite(0); bload(2); e("s_waitcnt vmcnt(4)"); bwrite(1); bload(3)
    e("s_waitcnt lgkmcnt(0)"); e("s_barrier")
    e("s_and_b32 s49, s14, 3")
    e("v_and_b32 v6, 15, v1"); e("v_lshrrev_b32 v7, 4, v1")
    e("s_lshl_b32 s47, s49, 5"); e("v_add_u32 v8, s47, v6"); e(f"v_mul_u32_u24 v8, {PA}, v8")
    e("v_lshlrev_b32 v9, 4, v7"); e("v_add_u32 v4, v8, v9")
    e("v_lshlrev_b32 v8, 3, v7"); e("v_lshrrev_b32 v9, 2, v6"); e("v_add_u32 v8, v8, v9")
    e(f"v_mul_u32_u24 v9, {PB}, v8"); e("v_and_b32 v8, 8, v8"); e("v_lshlrev_b32 v8, 2, v8"); e("v_add_u32 v9, v9, v8")
    e("v_and_b32 v8, 3, v6"); e("v_lshlrev_b32 v8, 3, v8"); e("v_add_u32 v9, v9, v8"); e(f"v_add_u32 v5, {LDS_B0}, v9")
    ACC=100
    for r in range(80): e(f"v_mov_b32 v{ACC+r}, 0")
    e("s_cmp_ge_u32 s14, 4"); e("s_cbranch_scc1 k1_wn1")
    AF=28; BF=36
    def mainloop(cols, notrans):
        lp=f"k1_loop{len(notrans)}"
        FS=[28,192]
        def reads(ks):
            o=(ks&1)*BBUF; F=FS[ks&1]; r=[]
            for m in range(2): r.append(f"ds_read_b128 v[{F+4*m}:{F+4*m+3}], v4 offset:{m*16*PA+(ks&1)*64}")
            for t,c in enumerate(cols):
                r.append(f"ds_read_b64_tr_b16 v[{F+8+4*t}:{F+8+4*t+1}], v5 offset:{o+c}")
                r.append(f"ds_read_b64_tr_b16 v[{F+8+4*t+2}:{F+8+4*t+3}], v5 offset:{o+c+4*PB}")
            return r
        for r in reads(0): e(r)
        e("s_waitcnt lgkmcnt(0)"); e("s_barrier")
        if notrans: stamp()
        e("s_mov_b32 s52, 0"); lab(lp)
        for ks in range(2):
            if ks==1: e("v_add_u32 v4, 128, v4")
            rd=reads(ks+1); F=FS[ks]; n=0
            for t in range(10):
                for m in range(2):
                    a=f"v[{F+4*m}:{F+4*m+3}]"; b=f"v[{F+8+4*t}:{F+8+4*t+3}]"; d=ACC+(t*2+m)*4
                    if t in notrans: e(f"v_mfma_f32_16x16x32_bf16 v[{d}:{d+3}], {a}, {b}, v[{d}:{d+3}]")
                    else: e(f"v_mfma_f32_16x16x32_bf16 v[{d}:{d+3}], {b}, {a}, v[{d}:{d+3}]")
                    for _ in range(2 if n<2 else 1):
                        if rd: e(rd.pop(0))
                    n+=1
                if t==6:
                    e("s_waitcnt vmcnt(4)"); bwrite(ks&1); bload(ks+4)
            e("s_waitcnt lgkmcnt(0)"); e("s_barrier")
        e("s_add_u32 s52, s52, 1"); e("s_cmp_lt_u32 s52, 7"); e(f"s_cbranch_scc1 {lp}")
        e("s_nop 7"); e("s_nop 1")
        if notrans: stamp()
    def hstore(gt, ut, fcol):
        for m in range(2):
            g=ACC+(gt*2+m)*4; u=ACC+(ut*2+m)*4
            silu_mul4(g,u,94)
            e(f"v_cvt_pk_bf16_f32 v{g}, v{g}, v{g+1}"); e(f"v_cvt_pk_bf16_f32 v{g+1}, v{g+2}, v{g+3}")
            e(f"buffer_store_dwordx2 v[{g}:{g+1}], v90, s[32:35], 0 offen offset:{fcol*2}" if m==0 else
              f"buffer_store_dwordx2 v[{g}:{g+1}], v91, s[32:35], 0 offen offset:{fcol*2}")
    def epi_common():
        e("v_and_b32 v6, 15, v1"); e("v_lshrrev_b32 v7, 4, v1")
        e("s_lshl_b32 s46, s3, 7"); e("s_lshl_b32 s47, s49, 5"); e("s_add_u32 s46, s46, s47")
        e("v_add_u32 v8, s46, v6"); e("v_mul_u32_u24 v90, 3584, v8"); e("v_lshlrev_b32 v9, 3, v7"); e("v_add_u32 v90, v90, v9")
        e("s_mul_i32 s47, s2, 224"); e("v_add_u32 v90, s47, v90"); e(f"v_add_u32 v91, {16*3584}, v90")
    mainloop([0,32,64,96,128,160,192,224,416,448], {2,3,4,5})
    epi_common()
    hstore(6,8,0); hstore(7,9,16)
    e("v_mul_u32_u24 v92, 896, v8"); e("v_add_u32 v92, v92, v9"); e("s_mul_i32 s47, s2, 56"); e("v_add_u32 v92, s47, v92")
    e(f"v_add_u32 v92, {WS_PQ}, v92"); e("v_add_u32 v93, 14336, v92")
    for t in range(2):
        for m in range(2):
            d=ACC+(t*2+m)*4
            phi4(d,94)
            e(f"v_cvt_pk_bf16_f32 v{d}, v{d}, v{d+1}"); e(f"v_cvt_pk_bf16_f32 v{d+1}, v{d+2}, v{d+3}")
            if t==1:
                e("v_cmp_gt_u32 vcc, 48, v1"); e("s_and_saveexec_b64 s[38:39], vcc")
            e(f"buffer_store_dwordx2 v[{d}:{d+1}], v{92+m}, s[32:35], 0 offen offset:{t*32}")
            if t==1: e("s_mov_b64 exec, s[38:39]")
    for t in (2,3):
        for m in range(2):
            d=ACC+(t*2+m)*4
            phi4(d,94)
    e("v_and_b32 v6, 15, v1"); e("v_cmp_eq_u32 vcc, 12, v6"); e("s_nop 1")
    for m in range(2):
        d=ACC+(5*2+m)*4
        for r in range(4): e(f"v_cndmask_b32 v{d+r}, v{d+r}, 1.0, vcc")
    for t in range(2,6):
        f=AF+(t-2)*4
        for m in range(2):
            d=ACC+(t*2+m)*4
            e(f"v_cvt_pk_bf16_f32 v{f+2*m}, v{d}, v{d+1}"); e(f"v_cvt_pk_bf16_f32 v{f+2*m+1}, v{d+2}, v{d+3}")
    for r in range(16): e(f"v_mov_b32 v{48+r}, 0")
    e("s_nop 1")
    for dt in range(2):
        for et in range(2):
            d=48+(dt*2+et)*4
            e(f"v_mfma_f32_16x16x32_bf16 v[{d}:{d+3}], v[{AF+dt*4}:{AF+dt*4+3}], v[{AF+8+et*4}:{AF+8+et*4+3}], v[{d}:{d+3}]")
    e("s_nop 7"); e("s_nop 1")
    e("v_lshrrev_b32 v7, 4, v1"); e("v_lshlrev_b32 v7, 9, v7"); e("v_lshlrev_b32 v6, 2, v6"); e("v_add_u32 v7, v7, v6")
    e("s_lshl_b32 s47, s49, 12"); e("v_add_u32 v7, s47, v7"); e(f"v_add_u32 v7, {LDS_B0}, v7")
    for dt in range(2):
        for et in range(2):
            d=48+(dt*2+et)*4
            for r in range(4): e(f"ds_write_b32 v7, v{d+r} offset:{dt*2048+r*128+et*64}")
    e("s_branch k1_red")
    lab("k1_wn1")
    mainloop([256,288,320,352,384,480,512,544,576,608], set())
    epi_common()
    for t in range(5): hstore(t,5+t,32+16*t)
    lab("k1_red")
    e("s_waitcnt lgkmcnt(0)"); e("s_barrier")
    e("s_cmp_ge_u32 s14, 4"); e("s_cbranch_scc1 k1_done")
    e(f"v_lshlrev_b32 v7, 4, v0"); e(f"v_add_u32 v8, {LDS_B0}, v7")
    for w in range(4): e(f"ds_read_b128 v[{48+4*w}:{51+4*w}], v8 offset:{w*4096}")
    e("s_waitcnt lgkmcnt(0)")
    for r in range(4):
        e(f"v_add_f32 v{48+r}, v{48+r}, v{52+r}"); e(f"v_add_f32 v{56+r}, v{56+r}, v{60+r}"); e(f"v_add_f32 v{48+r}, v{48+r}, v{56+r}")
    e("s_lshl_b32 s46, s3, 4"); e("s_add_u32 s46, s46, s2"); e("s_lshl_b32 s46, s46, 12"); e(f"s_add_u32 s46, s46, {WS_KVP}")
    e("buffer_store_dwordx4 v[48:51], v7, s[32:35], s46 offen")
    e("s_waitcnt vmcnt(0)"); stamp(); stamp_out(1)
    lab("k1_done"); e("s_endpgm")

def kr():
    lab("kr_kernel_body")
    e("s_and_b32 s60, s2, 1"); e("s_lshr_b32 s2, s2, 1")
    e("v_cmp_gt_u32 vcc, 256, v0"); e("s_nop 4"); e("s_cbranch_vccz kr_done")
    e("s_load_dwordx2 s[4:5], s[0:1], 16"); e("s_load_dwordx2 s[12:13], s[0:1], 72")
    e("s_waitcnt lgkmcnt(0)")
    srd(16,4,401408); srd(32,12,0x10000000)
    e("v_lshlrev_b32 v1, 4, v0")
    e("s_lshl_b32 s3, s2, 12"); e(f"s_add_u32 s3, s3, {WS_KVP}")
    for m in range(16):
        e(f"buffer_load_dwordx4 v[{8+4*m}:{11+4*m}], v1, s[32:35], s3 offen"); e("s_add_u32 s3, s3, 0x10000")
    e("v_lshlrev_b32 v2, 2, v0"); e("s_mul_i32 s3, s2, 25088")
    for k in range(28): e(f"buffer_load_dword v{80+k}, v2, s[16:19], s3 offen offset:{k*896}" if k<4 else
                          f"buffer_load_dword v{80+k}, v{3}, s[16:19], s3 offen offset:{(k%4)*896}")  if (k<4 or True) and (k%4 or k==0 or not e(f"v_add_u32 v3, {(k//4)*4*896}, v2")) else None
    e("s_waitcnt vmcnt(28)")
    for m in range(1,16):
        for r in range(4): e(f"v_add_f32 v{8+r}, v{8+r}, v{8+4*m+r}")
    e("v_cvt_pk_bf16_f32 v12, v8, v9"); e("v_cvt_pk_bf16_f32 v13, v10, v11")
    e("v_lshlrev_b32 v8, 16, v12"); e("v_and_b32 v9, 0xffff0000, v12"); e("v_lshlrev_b32 v10, 16, v13"); e("v_and_b32 v11, 0xffff0000, v13")
    e("ds_write_b128 v1, v[8:11]"); e("s_waitcnt lgkmcnt(0)"); e("s_barrier")
    e("v_lshlrev_b32 v4, 7, v0"); e("ds_read_b32 v5, v4 offset:112")
    e("s_mul_i32 s3, s2, 112"); e(f"s_add_u32 s3, s3, {WS_Z}")
    e("v_cmp_gt_u32 vcc, 28, v0"); e("s_and_saveexec_b64 s[38:39], vcc"); e("s_cbranch_execz kr_nz")
    e("s_waitcnt lgkmcnt(0)"); e("buffer_store_dword v5, v2, s[32:35], s3 offen sc1")
    lab("kr_nz"); e("s_mov_b64 exec, s[38:39]")
    e("s_waitcnt vmcnt(0) lgkmcnt(0)")
    for k in range(28):
        e(f"v_lshlrev_b32 v{112+k}, 16, v{80+k}"); e(f"v_and_b32 v{80+k}, 0xffff0000, v{80+k}")
    e("s_mul_i32 s61, s60, 1792"); e("v_mov_b32 v4, s61")
    e("s_mul_i32 s3, s2, 25088"); e(f"s_add_u32 s3, s3, {WS_KW}"); e("s_mul_i32 s61, s60, 12544"); e("s_add_u32 s3, s3, s61")
    e("v_cmp_gt_u32 vcc, 224, v0"); e("s_and_saveexec_b64 s[38:39], vcc")
    for d in range(14):
        for q in range(7): e(f"ds_read_b128 v[{40+4*q}:{43+4*q}], v4 offset:{d*128+q*16}")
        e("s_waitcnt lgkmcnt(0)")
        e(f"v_mul_f32 v6, v40, v112"); e(f"v_mul_f32 v7, v40, v80")
        for k in range(1,28):
            e(f"v_fmac_f32 v6, v{40+k}, v{112+k}"); e(f"v_fmac_f32 v7, v{40+k}, v{80+k}")
        e("v_cvt_pk_bf16_f32 v6, v6, v7")
        e(f"buffer_store_dword v6, v2, s[32:35], s3 offen sc1"); e("s_add_u32 s3, s3, 896"); e("s_nop 1")
    e("s_mov_b64 exec, -1"); e("s_waitcnt vmcnt(0)"); e("s_barrier")
    e("s_load_dwordx2 s[56:57], s[0:1], 64"); e("s_waitcnt lgkmcnt(0)")
    e("s_mov_b32 s58, 256"); e("s_mov_b32 s59, 0x00020000"); e("v_mov_b32 v5, 1"); e("v_mov_b32 v4, 0")
    e("v_cmp_eq_u32 vcc, 0, v0"); e("s_and_saveexec_b64 s[38:39], vcc"); e("s_cbranch_execz kr_done")
    e("buffer_atomic_add v5, v4, s[56:59], 0 offen sc1"); e("s_waitcnt vmcnt(0)")
    lab("kr_done"); e("s_endpgm")

P2=160; P3=192
CH=64*P2+64*P2+0
A2P=928; A2OFF=4*(64*P2+64*P3)
def a2prep():
    e("s_load_dwordx2 s[56:57], s[0:1], 64"); e("s_waitcnt lgkmcnt(0)")
    e("s_mov_b32 s58, 256"); e("s_mov_b32 s59, 0x00020000"); e("v_mov_b32 v34, 0")
    lab("k23_poll")
    e("buffer_load_dword v35, v34, s[56:59], 0 offen sc1"); e("s_waitcnt vmcnt(0)")
    e("v_readfirstlane_b32 s54, v35"); e("s_nop 3"); e("s_cmp_ge_u32 s54, 32"); e("s_cbranch_scc1 k23_go")
    e("s_sleep 2"); e("s_branch k23_poll")
    lab("k23_go")
    e("v_and_b32 v36, 15, v0"); e("v_mul_u32_u24 v37, 56, v36"); e("v_lshrrev_b32 v38, 4, v0")
    e("v_lshlrev_b32 v34, 1, v37"); e(f"s_mov_b32 s51, {WS_Z}")
    for q in range(7): e(f"buffer_load_dwordx4 v[{116+4*q}:{119+4*q}], v34, s[32:35], s51 offen offset:{q*16} sc1")
    e(f"s_mov_b32 s55, {WS_PQ}")
    PQ=[232,20]
    for i in range(2):
        e(f"v_add_u32 v39, {32*i}, v38"); e("v_add_u32 v34, s46, v39"); e("v_mul_u32_u24 v34, 896, v34"); e("v_add_u32 v34, v34, v37")
        for q in range(7): e(f"buffer_load_dwordx2 v[{PQ[i]+2*q}:{PQ[i]+2*q+1}], v34, s[32:35], s55 offen offset:{q*8}")
    e("s_waitcnt vmcnt(0)")
    for i in range(2):
        b=PQ[i]
        e("v_mov_b32 v88, 0x358637bd"); e("v_mov_b32 v89, 0")
        for k in range(14):
            e(f"v_lshlrev_b32 v90, 16, v{b+k}"); e(f"v_and_b32 v91, 0xffff0000, v{b+k}")
            e(f"v_fmac_f32 v88, v90, v{116+2*k}"); e(f"v_fmac_f32 v89, v91, v{117+2*k}")
        e("v_add_f32 v88, v88, v89"); e("v_rcp_f32 v88, v88"); e("s_nop 0")
        for k in range(14):
            e(f"v_lshlrev_b32 v90, 16, v{b+k}"); e(f"v_and_b32 v91, 0xffff0000, v{b+k}")
            e("v_mul_f32 v90, v90, v88"); e("v_mul_f32 v91, v91, v88")
            e(f"v_cvt_pk_bf16_f32 v{b+k}, v90, v91")
        e(f"v_add_u32 v39, {32*i}, v38"); e(f"v_mul_u32_u24 v34, {A2P}, v39"); e("v_add_u32 v34, v34, v37"); e(f"v_add_u32 v34, {A2OFF}, v34")
        for q in range(7): e(f"ds_write_b64 v34, v[{b+2*q}:{b+2*q+1}] offset:{q*8}")

def k23():
    kernel_head("k23_kernel")
    e("s_cmp_lt_u32 s2, 32"); e("s_cbranch_scc1 kr_kernel_body"); e("s_sub_u32 s2, s2, 32"); e("s_cmp_ge_u32 s2, 224"); e("s_cbranch_scc1 k23_done"); stamp()
    e("v_lshrrev_b32 v1, 6, v0"); e("s_nop 0"); e("v_readfirstlane_b32 s53, v1"); e("s_nop 3"); e("s_add_u32 s53, s53, s2")
    e("s_load_dwordx2 s[4:5], s[0:1], 0"); e("s_load_dwordx2 s[6:7], s[0:1], 48")
    e("s_load_dwordx2 s[8:9], s[0:1], 56"); e("s_load_dwordx2 s[12:13], s[0:1], 72")
    e("s_and_b32 s3, s2, 7"); e("s_lshr_b32 s2, s2, 3")
    e("s_mul_i32 s14, s2, 9363"); e("s_lshr_b32 s14, s14, 16")
    e("s_mul_i32 s15, s14, 7"); e("s_sub_u32 s2, s2, s15")
    e("s_lshl_b32 s14, s14, 3"); e("s_add_u32 s3, s3, s14")
    e("v_lshrrev_b32 v1, 6, v0"); e("s_nop 0"); e("v_readfirstlane_b32 s14, v1"); e("v_and_b32 v1, 63, v0")
    e("s_waitcnt lgkmcnt(0)")
    srd(16,4,1835008); srd(20,6,1605632); srd(24,8,1835008); srd(32,12,0x10000000)
    srd(28,12,401408,WS_KW)
    BOFF=64*P2; BUF=64*P2+64*P3
    e("v_lshrrev_b32 v6, 3, v0"); e("v_and_b32 v7, 7, v0"); e("v_lshlrev_b32 v7, 4, v7")
    e("s_lshl_b32 s46, s3, 6"); e("v_add_u32 v8, s46, v6"); e("v_mul_u32_u24 v2, 3584, v8"); e("v_add_u32 v2, v2, v7")
    e("v_mul_u32_u24 v3, 896, v6"); e("v_add_u32 v3, v3, v7"); e("s_lshl_b32 s47, s2, 7"); e("v_add_u32 v3, s47, v3")
    e(f"v_mul_u32_u24 v4, {P2}, v6"); e("v_add_u32 v4, v4, v7")
    e("v_and_b32 v8, 8, v6"); e("v_lshlrev_b32 v8, 2, v8"); e(f"v_mul_u32_u24 v5, {P3}, v6"); e("v_add_u32 v5, v5, v7"); e("v_add_u32 v5, v5, v8"); e(f"v_add_u32 v5, {BOFF}, v5")
    e("s_and_b32 s49, s14, 3"); e("s_lshr_b32 s50, s14, 2")
    e("v_and_b32 v6, 15, v1"); e("v_lshrrev_b32 v7, 4, v1")
    e("s_lshl_b32 s47, s49, 4"); e("v_add_u32 v8, s47, v6"); e(f"v_mul_u32_u24 v9, {P2}, v8"); e("v_lshlrev_b32 v10, 4, v7"); e("v_add_u32 v10, v9, v10")
    e(f"v_mul_u32_u24 v9, {A2P}, v8"); e("v_lshlrev_b32 v12, 4, v7"); e("v_add_u32 v12, v9, v12"); e(f"v_add_u32 v12, {A2OFF}, v12")
    e("v_lshlrev_b32 v8, 3, v7"); e("v_lshrrev_b32 v9, 2, v6"); e("v_add_u32 v8, v8, v9")
    e(f"v_mul_u32_u24 v9, {P3}, v8"); e("v_and_b32 v8, 8, v8"); e("v_lshlrev_b32 v8, 2, v8"); e("v_add_u32 v9, v9, v8")
    e("v_and_b32 v8, 3, v6"); e("v_lshlrev_b32 v8, 3, v8"); e("v_add_u32 v9, v9, v8"); e("s_lshl_b32 s47, s50, 6"); e("v_add_u32 v9, s47, v9"); e(f"v_add_u32 v11, {BOFF}, v9")
    for a,b in ((4,16),(5,17),(10,18),(11,19)): e(f"v_add_u32 v{b}, {2*BUF}, v{a}")
    NC=28+7
    ST=152
    def gload(c):
        s=ST+(c%4)*8
        if c<28:
            if c==0: e("s_mov_b32 s44, 0"); e("s_mov_b32 s45, 0")
            else: e("s_add_u32 s44, s44, 128"); e(f"s_add_u32 s45, s45, {64*896}")
            e(f"buffer_load_dwordx4 v[{s}:{s+3}], v2, s[32:35], s44 offen")
            e(f"buffer_load_dwordx4 v[{s+4}:{s+7}], v3, s[20:23], s45 offen")
        else:
            e(f"s_mov_b32 s45, {(c-28)*64*896}")
            e(f"buffer_load_dwordx4 v[{s+4}:{s+7}], v3, s[28:31], s45 offen sc1")
    def gwrite(c):
        s=ST+(c%4)*8; o=(c&1)*BUF; hi=(c>>1)&1
        if c<28: e(f"ds_write_b128 v{16 if hi else 4}, v[{s}:{s+3}] offset:{o}")
        e(f"ds_write_b128 v{17 if hi else 5}, v[{s+4}:{s+7}] offset:{o}")
    def nld(c): return 0 if c>=NC else (2 if c<28 else 1)
    gload(0); gload(1); gload(2); gload(3)
    for r in range(16): e(f"v_mov_b32 v{100+r}, 0")
    e("s_waitcnt vmcnt(4)"); gwrite(0); gwrite(1); gload(4); gload(5)
    e("s_waitcnt vmcnt(4)"); gwrite(2); gwrite(3); gload(6); gload(7)
    e("s_waitcnt lgkmcnt(0)"); e("s_barrier")
    FS=[40,184]
    def reads(S):
        r=[]
        for c in (2*S,2*S+1):
            if c>=NC: continue
            o=(c&1)*BUF; hi=(c>>1)&1; F=FS[S&1]+(c&1)*24
            for ks in range(2):
                if c<28: r.append(f"ds_read_b128 v[{F+4*ks}:{F+4*ks+3}], v{18 if hi else 10} offset:{o+ks*64}")
                else: r.append(f"ds_read_b128 v[{F+4*ks}:{F+4*ks+3}], v12 offset:{(c-28)*128+ks*64}")
                for t in range(2):
                    b=F+8+ks*8+t*4
                    r.append(f"ds_read_b64_tr_b16 v[{b}:{b+1}], v{19 if hi else 11} offset:{o+ks*32*P3+t*32}")
                    r.append(f"ds_read_b64_tr_b16 v[{b+2}:{b+3}], v{19 if hi else 11} offset:{o+ks*32*P3+t*32+4*P3}")
        return r
    for r in reads(0): e(r)
    e("s_waitcnt lgkmcnt(0)"); e("s_barrier")
    stamp(); e("s_mov_b32 s52, 0"); lab("k23_loop")
    for S in [0,1]+list(range(10,18)):
        if S==10: e("s_add_u32 s52, s52, 1"); e("s_cmp_lt_u32 s52, 5"); e("s_cbranch_scc1 k23_loop"); stamp(); a2prep()
        rd=reads(S+1)
        c0=2*S+4
        if c0<NC:
            e(f"s_waitcnt vmcnt({nld(c0+2)+nld(c0+3)})"); gwrite(c0)
            if c0+1<NC: gwrite(c0+1)
            if c0+4<NC: gload(c0+4)
            if c0+5<NC: gload(c0+5)
        for c in (2*S,2*S+1):
            if c>=NC: continue
            acc=100 if c<28 else 108; F=FS[S&1]+(c&1)*24
            for ks in range(2):
                for t in range(2):
                    b=F+8+ks*8+t*4
                    e(f"v_mfma_f32_16x16x32_bf16 v[{acc+4*t}:{acc+4*t+3}], v[{b}:{b+3}], v[{F+4*ks}:{F+4*ks+3}], v[{acc+4*t}:{acc+4*t+3}]")
                    for _ in range(3):
                        if rd: e(rd.pop(0))
        while rd: e(rd.pop(0))
        e("s_waitcnt lgkmcnt(0)"); e("s_barrier")
    e("s_nop 7"); e("s_nop 1")
    stamp()
    e("v_and_b32 v6, 15, v1"); e("v_lshrrev_b32 v7, 4, v1")
    e("s_lshl_b32 s47, s49, 4"); e("s_add_u32 s47, s47, s46"); e("v_add_u32 v8, s47, v6"); e("v_mul_u32_u24 v8, 896, v8")
    e("v_lshlrev_b32 v9, 3, v7"); e("v_add_u32 v8, v8, v9"); e("s_lshl_b32 s47, s2, 7"); e("s_lshl_b32 s48, s50, 6"); e("s_add_u32 s47, s47, s48"); e("v_add_u32 v8, s47, v8")
    for t in range(2): e(f"buffer_load_dwordx2 v[{20+2*t}:{21+2*t}], v8, s[16:19], 0 offen offset:{t*32}")
    e("v_mov_b32 v30, 1.0")
    silu_mul4(100,30,32,0); silu_mul4(104,30,32,0)
    e("s_waitcnt vmcnt(0)")
    for t in range(2):
        e(f"v_lshlrev_b32 v24, 16, v{20+2*t}"); e(f"v_and_b32 v25, 0xffff0000, v{20+2*t}")
        e(f"v_lshlrev_b32 v26, 16, v{21+2*t}"); e(f"v_and_b32 v27, 0xffff0000, v{21+2*t}")
        for r in range(4): e(f"v_fmac_f32 v{24+r}, v{100+4*t+r}, v{108+4*t+r}")
        e("v_cvt_pk_bf16_f32 v24, v24, v25"); e("v_cvt_pk_bf16_f32 v25, v26, v27")
        e(f"buffer_store_dwordx2 v[24:25], v8, s[24:27], 0 offen offset:{t*32}"); e("s_nop 1")
    e("s_waitcnt vmcnt(0)"); stamp(); stamp_out(2)
    lab("k23_done"); e("s_endpgm")

hdr=open(f"cdna_kernels/{NAME}.s.ref").read().split("; @launch")[0]
k1(); k23(); kr()
LDS1=LDS_B0+2*BBUF; LDS23=A2OFF+64*A2P
out=hdr+f"; @launch kernel=k1_kernel grid=(256,1,1) block=(512,1,1) lds={LDS1}\n"
out+=f"; @launch kernel=k23_kernel grid=(256,1,1) block=(512,1,1) lds={LDS23}\n"
out+='.amdgcn_target "amdgcn-amd-amdhsa--gfx950"\n.text\n'+"\n".join(L)+"\n"
out+='.section .rodata,"a"\n'
for k,v in (("k1_kernel",240),("k23_kernel",256)):
    out+=f""".p2align 6
.amdhsa_kernel {k}
  .amdhsa_next_free_vgpr {v}
  .amdhsa_next_free_sgpr 102
  .amdhsa_accum_offset {v}
  .amdhsa_group_segment_fixed_size 0
  .amdhsa_kernarg_size 80
  .amdhsa_user_sgpr_count 2
  .amdhsa_user_sgpr_kernarg_segment_ptr 1
  .amdhsa_system_sgpr_workgroup_id_x 1
.end_amdhsa_kernel
"""
open(f"cdna_kernels/{NAME}{X}.s","w").write(out)
print(LDS1,LDS23,len(out))
for d,m,n in ((14,4682,512),(21,3121,1024),(7,9363,64),(96,683,512),(3,0x5556,96)):
    assert all((t*m)>>16==t//d for t in range(n)),d
```
